```python
import torch

def _softmax(x, axis=-1):
    return torch.softmax(x, dim=axis)
def _gelu(x):
    return torch.nn.functional.gelu(x, approximate="tanh")
def _silu(x):
    return torch.nn.functional.silu(x)
def _sigmoid(x):
    return torch.sigmoid(x)
def _layernorm(x, axis=-1, eps=1e-5):
    m = x.mean(dim=axis, keepdim=True)
    v = x.var(dim=axis, keepdim=True, unbiased=False)
    return (x - m) / torch.sqrt(v + eps)
def _scatter_add(tgt, idx, src, axis=0):
    return tgt.clone().index_add_(axis, idx, src)
def _segment_sum(src, seg, n):
    out = torch.zeros((n,) + src.shape[1:], dtype=src.dtype)
    return out.index_add_(0, seg, src)
def _pad(x, pw):
    flat = tuple(v for pair in reversed(pw) for v in pair)
    return torch.nn.functional.pad(x, flat)

kernel_name = 'parallel_sum__sliding_local_dilated__glu_gated_swiglu__prompt'

def setup_inputs():

    _w = (lambda a: (lambda t: t.to(torch.bfloat16) if t.is_floating_point() else t)(torch.as_tensor(a)))
    def _A_setup():
        B, S, D = 1, 2048, 640
        return {
            "x": _w((lambda *s: torch.randn(*s, dtype=torch.bfloat16) * 0.05)(B, S, D)),
            "wqkv": _w((lambda *s: torch.randn(*s, dtype=torch.bfloat16) * 0.05)(D, 3 * D)),
            "wo": _w((lambda *s: torch.randn(*s, dtype=torch.bfloat16) * 0.05)(D, D)),
        }
    _A_in = _A_setup()

    def _B_setup():
        B, S, D, F = 1, 2048, 640, 1536
        return {
            "x": _w((lambda *s: torch.randn(*s, dtype=torch.bfloat16) * 0.05)(B, S, D)),
            "w1": _w((lambda *s: torch.randn(*s, dtype=torch.bfloat16) * 0.8)(D, F) * (2.0 / D) ** 0.5),
            "w3": _w((lambda *s: torch.randn(*s, dtype=torch.bfloat16) * 0.8)(D, F) * (2.0 / D) ** 0.5),
            "w2": _w((lambda *s: torch.randn(*s, dtype=torch.bfloat16) * 0.8)(F, D) * (2.0 / F) ** 0.5),
        }
    _B_in = _B_setup()

    return {
        "A_x": _A_in["x"],
        "A_wqkv": _A_in["wqkv"],
        "A_wo": _A_in["wo"],
        "B_x": _B_in["x"],
        "B_w1": _B_in["w1"],
        "B_w3": _B_in["w3"],
        "B_w2": _B_in["w2"],
    }

def reference(A_x, A_wqkv, A_wo, B_x, B_w1, B_w3, B_w2):
    def _A_ref(x, wqkv, wo):
        B, S, D = x.shape
        H = 32; Dh = D // H
        W, dil = 8, 2
        qkv = (lambda x, *d: x.permute(*d))((x @ wqkv).reshape(B, S, 3, H, Dh), 2, 0, 3, 1, 4)
        q, k, v = qkv[0], qkv[1], qkv[2]
        scale = Dh ** -0.5
        pos = torch.arange(S)
        off = torch.arange(W) * dil
        idx = pos[:, None] - off[None, :]
        mask = idx >= 0
        idx_c = torch.where(mask, idx, 0).reshape(-1)
        kg = k[:, :, idx_c, :].reshape(B, H, S, W, Dh)
        vg = v[:, :, idx_c, :].reshape(B, H, S, W, Dh)
        logits = torch.einsum("bhsd,bhswd->bhsw", q, kg) * scale
        logits = torch.where(mask[None, None, :, :], logits, -1e9)
        attn = _softmax(logits, axis=-1)
        o = torch.einsum("bhsw,bhswd->bhsd", attn, vg)
        return (lambda x, *d: x.permute(*d))(o, 0, 2, 1, 3).reshape(B, S, D) @ wo

    def _B_ref(x, w1, w3, w2):
        gate = torch.einsum("bsd,df->bsf", x, w1)
        up = torch.einsum("bsd,df->bsf", x, w3)
        h = _silu(gate) * up
        out = torch.einsum("bsf,fd->bsd", h, w2)
        return out

    x = A_x
    xn = _layernorm(x, axis=-1)
    return x + _A_ref(xn, A_wqkv, A_wo) + _B_ref(xn, B_w1, B_w3, B_w2)
```

```python
import sys
L=[]
def e(s): L.append("    "+s)
def lab(s): L.append(s+":")
WS_O=0; WS_H=4*1024*1024
def srd(d, lo, nbytes, off=0):
    if off:
        e(f"s_add_u32 s{d}, s{lo}, {off}"); e(f"s_addc_u32 s{d+1}, s{lo+1}, 0")
    else:
        e(f"s_mov_b32 s{d}, s{lo}"); e(f"s_mov_b32 s{d+1}, s{lo+1}")
    e(f"s_mov_b32 s{d+2}, {nbytes}"); e(f"s_mov_b32 s{d+3}, 0x00020000")
def rnd(v, t):
    e(f"v_cvt_pk_bf16_f32 v{t}, v{v}, v{v}"); e(f"v_lshlrev_b32 v{v}, 16, v{t}")

def ln(base, T):
    s1,s2,a,b,c,d=T,T+1,T+2,T+3,T+4,T+5
    e(f"v_mov_b32 v{s1}, 0"); e(f"v_mov_b32 v{s2}, 0"); e(f"v_mov_b32 v{T+8}, 0x3f803f80")
    for i in range(80):
        e(f"v_dot2c_f32_bf16 v{s1}, v{base+i}, v{T+8}"); e(f"v_dot2c_f32_bf16 v{s2}, v{base+i}, v{base+i}")
    for msk in (16,32):
        e(f"v_mbcnt_lo_u32_b32 v{a}, -1, 0"); e(f"v_mbcnt_hi_u32_b32 v{a}, -1, v{a}")
        e(f"v_xor_b32 v{a}, {msk}, v{a}"); e(f"v_lshlrev_b32 v{a}, 2, v{a}")
        e("s_nop 3")
        e(f"ds_bpermute_b32 v{b}, v{a}, v{s1}"); e(f"ds_bpermute_b32 v{c}, v{a}, v{s2}"); e("s_waitcnt lgkmcnt(0)")
        e(f"v_add_f32 v{s1}, v{s1}, v{b}"); e(f"v_add_f32 v{s2}, v{s2}, v{c}")
    e(f"v_mul_f32 v{s1}, 0x3acccccd, v{s1}")
    e(f"v_mul_f32 v{s2}, 0x3acccccd, v{s2}")
    e(f"v_fma_f32 v{s2}, -v{s1}, v{s1}, v{s2}"); e(f"v_max_f32 v{s2}, 0, v{s2}")
    rnd(s1,a); rnd(s2,a)
    e(f"v_add_f32 v{s2}, 0x3727c5ac, v{s2}"); rnd(s2,a)
    e(f"v_sqrt_f32 v{s2}, v{s2}"); e("s_nop 0"); rnd(s2,a)
    e(f"v_rcp_f32 v{s2}, v{s2}"); e("s_nop 0")
    for i in range(80):
        r=base+i
        e(f"v_lshlrev_b32 v{a}, 16, v{r}"); e(f"v_and_b32 v{b}, 0xffff0000, v{r}")
        e(f"v_sub_f32 v{a}, v{a}, v{s1}"); e(f"v_sub_f32 v{b}, v{b}, v{s1}")
        e(f"v_cvt_pk_bf16_f32 v{c}, v{a}, v{b}")
        e(f"v_lshlrev_b32 v{a}, 16, v{c}"); e(f"v_and_b32 v{b}, 0xffff0000, v{c}")
        e(f"v_mul_f32 v{a}, v{a}, v{s2}"); e(f"v_mul_f32 v{b}, v{b}, v{s2}")
        e(f"v_cvt_pk_bf16_f32 v{r}, v{a}, v{b}")

def k1():
    S=656; BUF=32*S; HALO=2*BUF; AS=528
    lab("k1_kernel")
    e("s_cmp_ge_u32 s2, 256"); e("s_cbranch_scc1 k1_end")
    e("s_load_dwordx4 s[4:7], s[0:1], 0"); e("s_load_dwordx4 s[8:11], s[0:1], 32"); e("s_load_dwordx2 s[12:13], s[0:1], 72")
    e("s_lshr_b32 s14, s2, 4"); e("s_and_b32 s15, s2, 15")
    e("v_and_b32 v1, 15, v0"); e("v_bfe_u32 v2, v0, 4, 2"); e("v_lshrrev_b32 v3, 6, v0")
    e("s_nop 1"); e("v_readfirstlane_b32 s16, v3")
    e("s_waitcnt lgkmcnt(0)")
    srd(20,4,2048*1280); srd(24,6,640*3840); srd(28,8,640*3072); srd(32,10,640*3072)
    srd(36,12,2048*1280,WS_O); srd(40,12,2048*3072,WS_H)
    e("s_cmp_lt_u32 s16, 2")
    for i in range(4): e(f"s_cselect_b32 s{44+i}, s{28+i}, s{32+i}")
    e("s_lshl_b32 s17, s14, 7"); e("s_lshl_b32 s18, s16, 5"); e("s_add_u32 s17, s17, s18")
    e("v_add_u32 v4, s17, v1"); e("v_mul_u32_u24 v5, 1280, v4"); e("v_lshl_add_u32 v5, v2, 4, v5")
    for i in range(2):
        for s in range(20):
            e(f"buffer_load_dwordx4 v[{96+80*i+4*s}:{99+80*i+4*s}], v5, s[20:23], 0 offen offset:{64*s}")
        if i==0: e("v_add_u32 v5, 20480, v5")
    e("s_mul_i32 s19, s15, 80")
    e("v_and_b32 v6, 15, v0"); e("v_lshrrev_b32 v7, 4, v0")
    e("v_cmp_gt_u32 vcc, 5, v6"); e("v_mov_b32 v8, 2480"); e("v_mov_b32 v9, 1280"); e("s_nop 0");
    e("v_cndmask_b32 v8, v8, v9, vcc")
    e("v_cmp_gt_u32 vcc, 10, v6"); e("v_mov_b32 v9, -160"); e("s_nop 1"); e("v_cndmask_b32 v8, v9, v8, vcc")
    e("v_cmp_gt_u32 vcc, 15, v6"); e("v_mov_b32 v9, 0x40000000"); e("s_nop 1"); e("v_cndmask_b32 v8, v9, v8, vcc")
    e("v_lshl_add_u32 v8, v6, 4, v8"); e("v_add_u32 v8, s19, v8")
    e("v_mul_u32_u24 v9, 3840, v7"); e("v_add_u32 v10, v8, v9"); e("v_add_u32 v11, 61440, v10")
    e("v_mul_u32_u24 v15, 656, v7"); e("v_lshl_add_u32 v15, v6, 4, v15"); e("v_add_u32 v16, 10496, v15")
    e("s_mul_i32 s19, s15, 192")
    for (j,expr) in ((2,"v_mov_b32 v6, v0"),(3,None),(4,"v_add_u32 v6, 128, v0")):
        if expr: e(expr)
        else:
            e("v_cmp_gt_u32 vcc, 128, v0"); e("v_add_u32 v6, 256, v0"); e("v_subrev_u32 v7, 128, v0"); e("s_nop 0"); e("v_cndmask_b32 v6, v7, v6, vcc")
        e("v_mul_u32_u24 v7, 0x5556, v6"); e("v_lshrrev_b32 v7, 18, v7")
        e("v_mul_u32_u24 v8, 12, v7"); e("v_sub_u32 v8, v6, v8")
        e(f"v_mul_u32_u24 v9, 3072, v7"); e("v_lshl_add_u32 v9, v8, 4, v9"); e(f"v_add_u32 v{10+j}, s19, v9")
        e("v_mul_u32_u24 v9, 656, v7"); e("v_lshl_add_u32 v9, v8, 4, v9")
        if j==2: e("v_add_u32 v17, 256, v9")
        elif j==4: e("v_add_u32 v19, 448, v9")
        else:
            e("v_add_u32 v7, 256, v9"); e("v_add_u32 v9, 448, v9"); e("v_cndmask_b32 v18, v9, v7, vcc")
    srds=[24,24,28,44,32]
    def gl(s,st):
        e(f"s_mov_b32 s48, {s*32*3840}"); e(f"s_mov_b32 s49, {s*32*3072}")
        for j in range(5):
            e(f"buffer_load_dwordx4 v[{st+4*j}:{st+4*j+3}], v{10+j}, s[{srds[j]}:{srds[j]+3}], s{48 if j<2 else 49} offen")
    def lw(b,st):
        for j in range(5): e(f"ds_write_b128 v{15+j}, v[{st+4*j}:{st+4*j+3}] offset:{b*BUF}")
    ST=[32,52]
    gl(0,ST[0])
    e("s_waitcnt vmcnt(5)")
    ln(96,20); ln(176,20)
    e("s_waitcnt vmcnt(0)"); lw(0,ST[0]); gl(1,ST[1])
    e("v_lshlrev_b32 v21, 4, v0"); e("v_and_b32 v21, 0x3ff, v21")
    e("s_cmp_lg_u32 s16, 3"); e("s_cbranch_scc1 k1_nohalo")
    for i in range(80): e(f"v_accvgpr_write_b32 a{176+i}, v{96+i}")
    e("s_lshl_b32 s17, s14, 7"); e("s_sub_u32 s17, s17, 16"); e("v_add_u32 v4, s17, v1"); e("v_mul_lo_u32 v5, v4, v22") if False else None
    e("s_movk_i32 s18, 1280"); e("v_mul_lo_u32 v5, v4, s18"); e("v_lshl_add_u32 v5, v2, 4, v5")
    for s in range(20): e(f"buffer_load_dwordx4 v[{96+4*s}:{99+4*s}], v5, s[20:23], 0 offen offset:{64*s}")
    e("s_waitcnt vmcnt(0)")
    ln(96,22)
    for s in range(20): e(f"ds_write_b128 v21, v[{96+4*s}:{99+4*s}] offset:{HALO+1024*s}")
    e("s_waitcnt lgkmcnt(0)")
    for i in range(80): e(f"v_accvgpr_read_b32 v{96+i}, a{176+i}")
    lab("k1_nohalo")
    for i in range(168): e(f"v_accvgpr_write_b32 a{i}, 0")
    e("v_lshrrev_b32 v20, 2, v1"); e("v_lshl_add_u32 v20, v2, 3, v20"); e(f"v_mul_u32_u24 v20, {S}, v20")
    e("v_and_b32 v22, 3, v1"); e("v_lshl_add_u32 v20, v22, 3, v20")
    e("v_lshl_add_u32 v23, v3, 5, v20")
    e("s_waitcnt lgkmcnt(0)")
    for s in range(20):
        b=s&1
        e("s_barrier")
        nw=0
        if s+1<20:
            e("s_waitcnt vmcnt(0)"); lw(1-b,ST[1-b])
            if s+2<20: gl(s+2,ST[b])
        e(f"ds_read_b128 v[72:75], v21 offset:{HALO+1024*s}")
        e(f"ds_read_b64_tr_b16 v[76:77], v23 offset:{b*BUF}"); e(f"ds_read_b64_tr_b16 v[78:79], v23 offset:{b*BUF+4*S}")
        e(f"ds_read_b64_tr_b16 v[24:25], v20 offset:{b*BUF+128}"); e(f"ds_read_b64_tr_b16 v[26:27], v20 offset:{b*BUF+128+4*S}")
        def rd(t):
            r=80+4*(t%4); o=b*BUF+32*t
            e(f"ds_read_b64_tr_b16 v[{r}:{r+1}], v20 offset:{o}"); e(f"ds_read_b64_tr_b16 v[{r+2}:{r+3}], v20 offset:{o+4*S}")
        for t in range(3): rd(t)
        e("s_waitcnt lgkmcnt(6)")
        e("v_mfma_f32_16x16x32_bf16 a[160:163], v[76:79], v[72:75], a[160:163]")
        e("v_mfma_f32_16x16x32_bf16 a[164:167], v[24:27], v[72:75], a[164:167]")
        for t in range(20):
            if t+3<20: rd(t+3); e("s_waitcnt lgkmcnt(6)")
            else: e(f"s_waitcnt lgkmcnt({2*(19-t)})")
            r=80+4*(t%4)
            for i in range(2):
                a=8*t+4*i
                e(f"v_mfma_f32_16x16x32_bf16 a[{a}:{a+3}], v[{r}:{r+3}], v[{96+80*i+4*s}:{99+80*i+4*s}], a[{a}:{a+3}]")
    e("s_nop 15"); e("s_barrier")
    def put(a, addr, off):
        for r in range(4): e(f"v_accvgpr_read_b32 v{24+r}, a{a+r}")
        for r in range(4): rnd(24+r,28)
        e(f"ds_write_b128 v{addr}, v[24:27] offset:{off}")
    e("v_lshl_add_u32 v4, v3, 5, v1"); e("v_add_u32 v4, 16, v4"); e(f"v_mul_u32_u24 v4, {AS}, v4"); e("v_lshl_add_u32 v4, v2, 4, v4")
    for t in range(8):
        for i in range(2): put(8*t+4*i,4,16*AS*i+64*t)
    e(f"v_mul_u32_u24 v5, {AS}, v1"); e("v_lshl_add_u32 v5, v2, 4, v5"); e("v_lshl_add_u32 v6, v3, 6, v5")
    put(160,6,0)
    e("s_cmp_lg_u32 s16, 0"); e("s_cbranch_scc1 k1_a"); put(164,5,256); lab("k1_a")
    e("s_lshl_b32 s17, s14, 7"); e("s_lshl_b32 s18, s16, 5"); e("s_add_u32 s17, s17, s18"); e("v_add_u32 v4, s17, v1")
    e("s_movk_i32 s18, 3072"); e("v_mul_lo_u32 v7, v4, s18"); e("v_lshl_add_u32 v7, v2, 3, v7"); e("s_mul_i32 s18, s15, 192"); e("v_add_u32 v7, s18, v7")
    for t in range(6):
        for i in range(2):
            for r in range(4): e(f"v_accvgpr_read_b32 v{32+r}, a{8*(8+t)+4*i+r}"); e(f"v_accvgpr_read_b32 v{36+r}, a{8*(14+t)+4*i+r}")
            for r in range(8): rnd(32+r,40)
            for r in range(4):
                g=32+r
                e(f"v_mul_f32 v40, 0xbfb8aa3b, v{g}"); e("v_exp_f32 v40, v40"); e("s_nop 0"); e("v_add_f32 v40, 1.0, v40"); e("v_rcp_f32 v40, v40"); e("s_nop 0")
                e(f"v_mul_f32 v{g}, v{g}, v40"); rnd(g,40); e(f"v_mul_f32 v{g}, v{g}, v{g+4}")
            e("v_cvt_pk_bf16_f32 v42, v32, v33"); e("v_cvt_pk_bf16_f32 v43, v34, v35")
            e(f"buffer_store_dwordx2 v[42:43], v7, s[40:43], 0 offen offset:{32*t}") if i==0 else (e("v_add_u32 v8, 49152, v7"), e(f"buffer_store_dwordx2 v[42:43], v8, s[40:43], 0 offen offset:{32*t}"))
            e("s_nop 1")
    e("s_waitcnt lgkmcnt(0)"); e("s_barrier")
    e("v_and_b32 v4, 127, v0"); e("v_lshrrev_b32 v5, 7, v0")
    e("v_add_u32 v6, 16, v4"); e(f"v_mul_u32_u24 v6, {AS}, v6"); e("v_mul_u32_u24 v7, 80, v5"); e("v_add_u32 v6, v6, v7")
    e("s_lshl_b32 s17, s14, 7"); e("v_add_u32 v8, s17, v4")
    for c in range(5): e(f"ds_read_b128 v[{44+4*c}:{47+4*c}], v6 offset:{320+16*c}")
    for w in range(8):
        o=-2*w*AS
        e(f"v_add_u32 v9, {o}, v6")
        for c in range(5): e(f"ds_read_b128 v[{64+4*c}:{67+4*c}], v9 offset:{16*c}")
        for c in range(5): e(f"ds_read_b128 v[{96+20*w+4*c}:{99+20*w+4*c}], v9 offset:{160+16*c}")
        e("s_waitcnt lgkmcnt(5)")
        e(f"v_mul_f32 v{32+w}, v44, v64")
        for d in range(1,20): e(f"v_fmac_f32 v{32+w}, v{44+d}, v{64+d}")
        rnd(32+w,40); e(f"v_mul_f32 v{32+w}, 0x3e64f92e, v{32+w}"); rnd(32+w,40)
        e(f"v_cmp_le_u32 vcc, {2*w}, v8"); e("v_mov_b32 v41, 0xce6e6b28"); e("s_nop 0"); e(f"v_cndmask_b32 v{32+w}, v41, v{32+w}, vcc")
    e("v_max_f32 v40, v32, v33")
    for w in range(2,8): e(f"v_max_f32 v40, v40, v{32+w}")
    e("v_mov_b32 v41, 0")
    for w in range(8):
        e(f"v_sub_f32 v{32+w}, v{32+w}, v40"); e(f"v_mul_f32 v{32+w}, 0x3fb8aa3b, v{32+w}"); e(f"v_exp_f32 v{32+w}, v{32+w}"); e("s_nop 0"); e(f"v_add_f32 v41, v41, v{32+w}")
    e("v_rcp_f32 v41, v41"); e("s_waitcnt lgkmcnt(0)")
    for w in range(8): e(f"v_mul_f32 v{32+w}, v{32+w}, v41"); rnd(32+w,40)
    for d in range(20):
        e(f"v_mul_f32 v{44+d}, v32, v{96+d}")
        for w in range(1,8): e(f"v_fmac_f32 v{44+d}, v{32+w}, v{96+20*w+d}")
    for d in range(10): e(f"v_cvt_pk_bf16_f32 v{64+d}, v{44+2*d}, v{45+2*d}")
    e("v_mul_u32_u24 v9, 1280, v8"); e("v_mul_u32_u24 v7, 40, v5"); e("v_add_u32 v9, v9, v7"); e("s_mul_i32 s18, s15, 80"); e("v_add_u32 v9, s18, v9")
    for c in range(5): e(f"buffer_store_dwordx2 v[{64+2*c}:{65+2*c}], v9, s[36:39], 0 offen offset:{8*c}")
    lab("k1_end"); e("s_endpgm")

def k2():
    S=176; BUF=128*S
    L.append(".p2align 8"); lab("k2_kernel")
    e("s_cmp_ge_u32 s2, 256"); e("s_cbranch_scc1 k2_end")
    e("s_load_dwordx2 s[4:5], s[0:1], 0"); e("s_load_dwordx2 s[6:7], s[0:1], 16"); e("s_load_dwordx4 s[8:11], s[0:1], 48"); e("s_load_dwordx2 s[12:13], s[0:1], 72")
    e("s_lshr_b32 s14, s2, 3"); e("s_and_b32 s15, s2, 7")
    e("v_and_b32 v1, 15, v0"); e("v_bfe_u32 v2, v0, 4, 2"); e("v_lshrrev_b32 v3, 6, v0")
    e("s_waitcnt lgkmcnt(0)")
    srd(20,4,2048*1280); srd(24,6,640*1280); srd(28,8,1536*1280); srd(32,10,2048*1280); srd(36,12,2048*1280,WS_O); srd(40,12,2048*3072,WS_H)
    e("s_lshl_b32 s17, s14, 6"); e("v_lshl_add_u32 v4, v3, 4, v1"); e("v_add_u32 v4, s17, v4")
    e("v_mul_u32_u24 v5, 1280, v4"); e("v_lshl_add_u32 v5, v2, 4, v5")
    e("s_movk_i32 s18, 3072"); e("v_mul_lo_u32 v6, v4, s18"); e("v_lshl_add_u32 v6, v2, 4, v6")
    e("s_mul_i32 s19, s15, 160")
    e("v_mul_u32_u24 v7, 1280, v4"); e("v_lshl_add_u32 v7, v2, 3, v7"); e("v_add_u32 v7, s19, v7")
    for t in range(5): e(f"buffer_load_dwordx2 v[{100+2*t}:{101+2*t}], v7, s[20:23], 0 offen offset:{32*t}")
    for j in range(5):
        e(f"v_add_u32 v8, {256*j}, v0"); e("v_mul_u32_u24 v9, 0x199a, v8"); e("v_lshrrev_b32 v9, 16, v9"); e("v_mul_u32_u24 v10, 10, v9"); e("v_sub_u32 v10, v8, v10")
        e(f"v_mul_u32_u24 v11, 1280, v9"); e("v_lshl_add_u32 v11, v10, 4, v11"); e(f"v_add_u32 v{12+j}, s19, v11")
        e(f"v_mul_u32_u24 v11, {S}, v9"); e(f"v_lshl_add_u32 v{17+j}, v10, 4, v11")
    e("v_lshrrev_b32 v22, 2, v1"); e("v_lshl_add_u32 v22, v2, 3, v22"); e(f"v_mul_u32_u24 v22, {S}, v22"); e("v_and_b32 v23, 3, v1"); e("v_lshl_add_u32 v22, v23, 3, v22")
    ST=[32,52]; AF=[72,120]
    def gl(s):
        st=ST[s&1]; sr=24 if s<5 else 28; ko=(s if s<5 else s-5)*128
        e(f"s_mov_b32 s48, {ko*1280}")
        for j in range(5): e(f"buffer_load_dwordx4 v[{st+4*j}:{st+4*j+3}], v{12+j}, s[{sr}:{sr+3}], s48 offen")
        e(f"s_mov_b32 s49, {ko*2}")
        for q in range(4):
            a=AF[s&1]+4*q
            e(f"buffer_load_dwordx4 v[{a}:{a+3}], v{5 if s<5 else 6}, s[{36 if s<5 else 40}:{39 if s<5 else 43}], s49 offen offset:{64*q}")
    def lw(s):
        for j in range(5): e(f"ds_write_b128 v{17+j}, v[{ST[s&1]+4*j}:{ST[s&1]+4*j+3}] offset:{(s&1)*BUF}")
    gl(0); e("s_waitcnt vmcnt(0)"); lw(0); gl(1)
    for i in range(20): e(f"v_accvgpr_write_b32 a{i}, 0")
    e("s_waitcnt lgkmcnt(0)")
    for s in range(17):
        b=s&1
        e("s_barrier")
        if s+1<17: e("s_waitcnt vmcnt(0)"); lw(s+1)
        idx=[(q,t) for q in range(4) for t in range(5)]
        def rd(n):
            q,t=idx[n]; r=140+4*(n%4); o=b*BUF+32*q*S+32*t
            e(f"ds_read_b64_tr_b16 v[{r}:{r+1}], v22 offset:{o}"); e(f"ds_read_b64_tr_b16 v[{r+2}:{r+3}], v22 offset:{o+4*S}")
        for n in range(3): rd(n)
        for n in range(20):
            if n+3<20: rd(n+3); e("s_waitcnt lgkmcnt(6)")
            else: e(f"s_waitcnt lgkmcnt({2*(19-n)})")
            q,t=idx[n]; r=140+4*(n%4); a=AF[b]+4*q
            e(f"v_mfma_f32_16x16x32_bf16 a[{4*t}:{4*t+3}], v[{r}:{r+3}], v[{a}:{a+3}], a[{4*t}:{4*t+3}]")
        if s+2<17: gl(s+2)
        if s==4:
            e("s_nop 15")
            for t in range(5):
                for r in range(4):
                    v=160+4*t+r; xr=100+2*t+(r>>1)
                    e(f"v_accvgpr_read_b32 v{v}, a{4*t+r}"); rnd(v,24)
                    e(f"v_lshlrev_b32 v24, 16, v{xr}" if r%2==0 else f"v_and_b32 v24, 0xffff0000, v{xr}")
                    e(f"v_add_f32 v{v}, v{v}, v24"); rnd(v,24); e(f"v_accvgpr_write_b32 a{4*t+r}, 0")
            e("s_nop 2")
    e("s_nop 15")
    for t in range(5):
        for r in range(4):
            e(f"v_accvgpr_read_b32 v{24+r}, a{4*t+r}"); rnd(24+r,28); e(f"v_add_f32 v{24+r}, v{24+r}, v{160+4*t+r}")
        e(f"v_cvt_pk_bf16_f32 v{180+2*t}, v24, v25"); e(f"v_cvt_pk_bf16_f32 v{181+2*t}, v26, v27")
        e(f"buffer_store_dwordx2 v[{180+2*t}:{181+2*t}], v7, s[32:35], 0 offen offset:{32*t}")
    lab("k2_end"); e("s_endpgm")

hdr=open("parallel_sum__sliding_local_dilated__glu_gated_swiglu__prompt.s.ref").read().split("; Override")[0]
out=hdr+"; @launch kernel=k1_kernel grid=(256,1,1) block=(256,1,1) lds=77824\n; @launch kernel=k2_kernel grid=(256,1,1) block=(256,1,1) lds=45056\n"
out+='.amdgcn_target "amdgcn-amd-amdhsa--gfx950"\n.text\n.globl k1_kernel\n.globl k2_kernel\n.p2align 8\n'
k1(); k2()
out+="\n".join(x for x in L)+"\n.section .rodata,\"a\"\n"
for k in ("k1_kernel","k2_kernel"):
    out+=f""".p2align 6
.amdhsa_kernel {k}
  .amdhsa_next_free_vgpr 512
  .amdhsa_next_free_sgpr 102
  .amdhsa_accum_offset 256
  .amdhsa_group_segment_fixed_size 0
  .amdhsa_kernarg_size 80
  .amdhsa_user_sgpr_count 2
  .amdhsa_user_sgpr_kernarg_segment_ptr 1
  .amdhsa_system_sgpr_workgroup_id_x 1
.end_amdhsa_kernel
"""
open("parallel_sum__sliding_local_dilated__glu_gated_swiglu__prompt.s","w").write(out)
```

```python
import os
L=[]
def e(s): L.append("    "+s)
def lab(s): L.append(s+":")
WS_O=0; WS_H=4<<20; WS_XN=16<<20; WS_W1=20<<20; WS_W2=28<<20
EXP=int(os.environ.get('EXP','0')); STAMP=int(os.environ.get('STAMP','0')); _st=[0]
def stamp():
    if not STAMP: return
    i=_st[0]; _st[0]+=1
    e(f"s_memtime s[{60+2*i}:{61+2*i}]")
def stamp_out(n,wsg):
    if not STAMP: return
    k=_st[0]; _st[0]=0
    e("s_waitcnt lgkmcnt(0)"); e("s_cmp_lg_u32 s2, 0"); e(f"s_cbranch_scc1 {n}_nost")
    e("s_load_dwordx2 s[88:89], s[0:1], 64"); e("s_waitcnt lgkmcnt(0)"); e("s_mov_b32 s90, 256"); e("s_mov_b32 s91, 0x00020000")
    e(f"s_lshl_b32 s94, s{wsg}, 6"); e("v_mov_b32 v1, 0")
    for i in range(k):
        e(f"s_sub_u32 s95, s{60+2*i}, s60"); e("v_mov_b32 v2, s95"); e(f"buffer_store_dword v2, v1, s[88:91], s94 offen offset:{4*i}")
    lab(f"{n}_nost")
def srd(d, lo, nbytes, off=0):
    if off:
        e(f"s_add_u32 s{d}, s{lo}, {off}"); e(f"s_addc_u32 s{d+1}, s{lo+1}, 0")
    else:
        e(f"s_mov_b32 s{d}, s{lo}"); e(f"s_mov_b32 s{d+1}, s{lo+1}")
    e(f"s_mov_b32 s{d+2}, {nbytes}"); e(f"s_mov_b32 s{d+3}, 0x00020000")
def rnd(v, t):
    e(f"v_cvt_pk_bf16_f32 v{t}, v{v}, v{v}"); e(f"v_lshlrev_b32 v{v}, 16, v{t}")
def rnd2(a,b,t):
    e(f"v_cvt_pk_bf16_f32 v{t}, v{a}, v{b}"); e(f"v_lshlrev_b32 v{a}, 16, v{t}"); e(f"v_and_b32 v{b}, 0xffff0000, v{t}")
NS=6; SB=20480; PD=6

def magic(d): return (1<<32)//d+1
def divc(q,r,x,d,t):
    e(f"s_mov_b32 s30, {magic(d)}"); e(f"v_mul_hi_u32 v{q}, v{x}, s30"); e(f"v_mul_u32_u24 v{t}, {d}, v{q}"); e(f"v_sub_u32 v{r}, v{x}, v{t}")
JOBS=[(8,1920,80,0),(32,1536,80,1),(40,1536,80,2),(16,640,80,3),(48,640,192,4)]
def k0():
    lab("k0_kernel")
    e("s_cmp_ge_u32 s2, 512"); e("s_cbranch_scc1 k0_rep")
    e("s_load_dwordx2 s[4:5], s[0:1], 0"); e("s_load_dwordx2 s[12:13], s[0:1], 72")
    e("v_lshrrev_b32 v3, 6, v0"); e("v_and_b32 v1, 63, v0"); e("s_lshl_b32 s14, s2, 2"); e("v_add_u32 v3, s14, v3")
    e("v_mul_u32_u24 v4, 1280, v3"); e("v_lshl_add_u32 v4, v1, 2, v4")
    e("v_lshrrev_b32 v5, 4, v3"); e("v_mul_u32_u24 v5, 20480, v5"); e("v_and_b32 v6, 15, v3"); e("v_lshl_add_u32 v5, v6, 4, v5")
    e("v_lshrrev_b32 v6, 4, v1"); e("v_lshl_add_u32 v5, v6, 10, v5"); e("v_bfe_u32 v6, v1, 2, 2"); e("v_lshl_add_u32 v5, v6, 8, v5"); e("v_and_b32 v6, 3, v1"); e("v_lshl_add_u32 v5, v6, 2, v5")
    e("s_waitcnt lgkmcnt(0)")
    srd(20,4,2048*1280); srd(24,12,2048*1280,WS_XN)
    for i in range(5): e(f"buffer_load_dword v{10+i}, v4, s[20:23], 0 offen offset:{256*i}")
    e("v_mov_b32 v20, 0"); e("v_mov_b32 v21, 0"); e("v_mov_b32 v22, 0x3f803f80")
    e("s_waitcnt vmcnt(0)")
    for i in range(5): e(f"v_dot2c_f32_bf16 v20, v{10+i}, v22"); e(f"v_dot2c_f32_bf16 v21, v{10+i}, v{10+i}")
    for m in (1,2,4,8,16,32):
        e(f"v_xor_b32 v23, {m}, v1"); e("v_lshlrev_b32 v23, 2, v23"); e("s_nop 2")
        e("ds_bpermute_b32 v24, v23, v20"); e("ds_bpermute_b32 v25, v23, v21"); e("s_waitcnt lgkmcnt(0)")
        e("v_add_f32 v20, v20, v24"); e("v_add_f32 v21, v21, v25")
    e("v_mul_f32 v20, 0x3acccccd, v20"); e("v_mul_f32 v21, 0x3acccccd, v21")
    e("v_fma_f32 v21, -v20, v20, v21"); e("v_max_f32 v21, 0, v21"); rnd(20,23); rnd(21,23)
    e("v_add_f32 v21, 0x3727c5ac, v21"); rnd(21,23); e("v_sqrt_f32 v21, v21"); e("s_nop 0"); rnd(21,23); e("v_rcp_f32 v21, v21"); e("s_nop 0")
    for i in range(5):
        r=10+i
        e(f"v_lshlrev_b32 v24, 16, v{r}"); e(f"v_and_b32 v25, 0xffff0000, v{r}")
        e("v_sub_f32 v24, v24, v20"); e("v_sub_f32 v25, v25, v20"); rnd2(24,25,26)
        e("v_mul_f32 v24, v24, v21"); e("v_mul_f32 v25, v25, v21"); e(f"v_cvt_pk_bf16_f32 v{r}, v24, v25")
        e(f"s_mov_b32 s31, {4096*i}"); e(f"buffer_store_dword v{r}, v5, s[24:27], s31 offen")
    e("s_endpgm")
    lab("k0_rep")
    e("s_cmp_ge_u32 s2, 832"); e("s_cbranch_scc1 k0_rep2")
    e("s_load_dwordx2 s[6:7], s[0:1], 8"); e("s_load_dwordx4 s[8:11], s[0:1], 32"); e("s_load_dwordx2 s[12:13], s[0:1], 72")
    e("s_sub_u32 s14, s2, 512"); e("s_mul_hi_u32 s15, s14, 214748365"); e("s_mul_i32 s17, s15, 20"); e("s_sub_u32 s17, s14, s17")
    e("v_and_b32 v1, 15, v0"); e("v_bfe_u32 v2, v0, 4, 2"); e("v_lshrrev_b32 v3, 6, v0"); e("v_and_b32 v4, 63, v0")
    e("s_nop 1"); e("v_readfirstlane_b32 s16, v3")
    e("s_waitcnt lgkmcnt(0)")
    srd(24,6,640*3840); srd(28,8,640*3072); srd(32,10,640*3072); srd(36,12,16*400*1024,WS_W1)
    e("s_cmp_lt_u32 s16, 2")
    for i in range(4): e(f"s_cselect_b32 s{44+i}, s{28+i}, s{32+i}")
    e("s_mul_i32 s19, s15, 80")
    e("v_and_b32 v6, 15, v0"); e("v_lshrrev_b32 v7, 4, v0")
    e("v_cmp_gt_u32 vcc, 5, v6"); e("v_mov_b32 v8, 2480"); e("v_mov_b32 v9, 1280"); e("s_nop 0"); e("v_cndmask_b32 v8, v8, v9, vcc")
    e("v_cmp_gt_u32 vcc, 10, v6"); e("v_mov_b32 v9, -160"); e("s_nop 1"); e("v_cndmask_b32 v8, v9, v8, vcc")
    e("v_cmp_gt_u32 vcc, 15, v6"); e("v_mov_b32 v9, 0x40000000"); e("s_nop 1"); e("v_cndmask_b32 v8, v9, v8, vcc")
    e("v_lshl_add_u32 v8, v6, 4, v8"); e("v_add_u32 v8, s19, v8")
    e("v_mul_u32_u24 v9, 3840, v7"); e("v_add_u32 v10, v8, v9"); e("v_add_u32 v11, 61440, v10")
    e("v_mul_u32_u24 v15, 656, v7"); e("v_lshl_add_u32 v15, v6, 4, v15"); e("v_add_u32 v16, 10496, v15")
    e("s_mul_i32 s19, s15, 192")
    for (j,expr) in ((2,"v_mov_b32 v6, v0"),(3,None),(4,"v_add_u32 v6, 128, v0")):
        if expr: e(expr)
        else:
            e("v_cmp_gt_u32 vcc, 128, v0"); e("v_add_u32 v6, 256, v0"); e("v_subrev_u32 v7, 128, v0"); e("s_nop 0"); e("v_cndmask_b32 v6, v7, v6, vcc")
        e("v_mul_u32_u24 v7, 0x5556, v6"); e("v_lshrrev_b32 v7, 18, v7"); e("v_mul_u32_u24 v8, 12, v7"); e("v_sub_u32 v8, v6, v8")
        e(f"v_mul_u32_u24 v9, 3072, v7"); e("v_lshl_add_u32 v9, v8, 4, v9"); e(f"v_add_u32 v{10+j}, s19, v9")
        e("v_mul_u32_u24 v9, 656, v7"); e("v_lshl_add_u32 v9, v8, 4, v9")
        if j==2: e("v_add_u32 v17, 256, v9")
        elif j==4: e("v_add_u32 v19, 448, v9")
        else:
            e("v_add_u32 v7, 256, v9"); e("v_add_u32 v9, 448, v9"); e("v_cndmask_b32 v18, v9, v7, vcc")
    srds=[24,24,28,44,32]
    e("s_mul_i32 s48, s17, 122880"); e("s_mul_i32 s49, s17, 98304")
    for j in range(5): e(f"buffer_load_dwordx4 v[{32+4*j}:{35+4*j}], v{10+j}, s[{srds[j]}:{srds[j]+3}], s{48 if j<2 else 49} offen")
    e("v_lshrrev_b32 v20, 2, v1"); e("v_lshl_add_u32 v20, v2, 3, v20"); e("v_mul_u32_u24 v20, 656, v20"); e("v_and_b32 v22, 3, v1"); e("v_lshl_add_u32 v20, v22, 3, v20"); e("v_lshl_add_u32 v20, v3, 5, v20")
    e("s_mul_i32 s18, s14, 20480"); e("v_lshlrev_b32 v21, 4, v4"); e("v_lshl_add_u32 v21, v3, 10, v21"); e("v_add_u32 v21, s18, v21")
    e("s_waitcnt vmcnt(0)")
    for j in range(5): e(f"ds_write_b128 v{15+j}, v[{32+4*j}:{35+4*j}]")
    e("s_waitcnt lgkmcnt(0)"); e("s_barrier")
    for j in range(5):
        e(f"ds_read_b64_tr_b16 v[{32+4*j}:{33+4*j}], v20 offset:{128*j}"); e(f"ds_read_b64_tr_b16 v[{34+4*j}:{35+4*j}], v20 offset:{128*j+4*656}")
    e("s_waitcnt lgkmcnt(0)")
    for j in range(5): e(f"s_mov_b32 s31, {4096*j}"); e(f"buffer_store_dwordx4 v[{32+4*j}:{35+4*j}], v21, s[36:39], s31 offen")
    e("s_endpgm")
    lab("k0_rep2")
    e("s_cmp_ge_u32 s2, 968"); e("s_cbranch_scc1 k0_fin")
    e("s_load_dwordx2 s[6:7], s[0:1], 16"); e("s_load_dwordx2 s[8:9], s[0:1], 48"); e("s_load_dwordx2 s[12:13], s[0:1], 72")
    e("s_sub_u32 s14, s2, 832"); e("s_mul_hi_u32 s15, s14, 252645136"); e("s_mul_i32 s17, s15, 17"); e("s_sub_u32 s17, s14, s17")
    e("v_and_b32 v1, 15, v0"); e("v_bfe_u32 v2, v0, 4, 2"); e("v_lshrrev_b32 v3, 6, v0"); e("v_and_b32 v4, 63, v0")
    e("s_waitcnt lgkmcnt(0)")
    srd(24,6,640*1280); srd(28,8,1536*1280); srd(36,12,8*68*5120,WS_W2)
    e("s_sub_u32 s18, s17, 5"); e("s_cmp_lt_u32 s17, 5")
    for i in range(4): e(f"s_cselect_b32 s{44+i}, s{24+i}, s{28+i}")
    e("s_cselect_b32 s18, s17, s18"); e("s_mul_i32 s48, s18, 163840")
    e("s_mul_i32 s19, s15, 160")
    for j in range(5):
        e(f"v_add_u32 v8, {256*j}, v0"); e("v_mul_u32_u24 v9, 0x199a, v8"); e("v_lshrrev_b32 v9, 16, v9"); e("v_mul_u32_u24 v10, 10, v9"); e("v_sub_u32 v10, v8, v10")
        e("v_mul_u32_u24 v11, 1280, v9"); e("v_lshl_add_u32 v11, v10, 4, v11"); e("v_add_u32 v11, s19, v11")
        e(f"buffer_load_dwordx4 v[{32+4*j}:{35+4*j}], v11, s[44:47], s48 offen")
        e("v_mul_u32_u24 v11, 176, v9"); e(f"v_lshl_add_u32 v{15+j}, v10, 4, v11")
    e("v_lshrrev_b32 v20, 2, v1"); e("v_lshl_add_u32 v20, v2, 3, v20"); e("v_lshl_add_u32 v20, v3, 5, v20"); e("v_mul_u32_u24 v20, 176, v20"); e("v_and_b32 v22, 3, v1"); e("v_lshl_add_u32 v20, v22, 3, v20")
    e("s_mul_i32 s18, s14, 20480"); e("v_lshlrev_b32 v21, 4, v4"); e("v_mul_u32_u24 v22, 5120, v3"); e("v_add_u32 v21, v21, v22"); e("v_add_u32 v21, s18, v21")
    e("s_waitcnt vmcnt(0)")
    for j in range(5): e(f"ds_write_b128 v{15+j}, v[{32+4*j}:{35+4*j}]")
    e("s_waitcnt lgkmcnt(0)"); e("s_barrier")
    for j in range(5):
        e(f"ds_read_b64_tr_b16 v[{32+4*j}:{33+4*j}], v20 offset:{32*j}"); e(f"ds_read_b64_tr_b16 v[{34+4*j}:{35+4*j}], v20 offset:{32*j+4*176}")
    e("s_waitcnt lgkmcnt(0)")
    for j in range(5): e(f"s_mov_b32 s31, {1024*j}"); e(f"buffer_store_dwordx4 v[{32+4*j}:{35+4*j}], v21, s[36:39], s31 offen")
    lab("k0_fin")
    e("s_endpgm")
    global K0G; K0G=968

def k1():
    AS=528
    L.append(".p2align 8"); lab("k1_kernel")
    e("s_cmp_ge_u32 s2, 256"); e("s_cbranch_scc1 k1_end")
    e("s_load_dwordx2 s[12:13], s[0:1], 72")
    stamp(); e("s_lshr_b32 s14, s2, 4"); e("s_and_b32 s15, s2, 15")
    e("v_and_b32 v1, 15, v0"); e("v_bfe_u32 v2, v0, 4, 2"); e("v_lshrrev_b32 v3, 6, v0"); e("v_and_b32 v4, 63, v0")
    e("s_nop 1"); e("v_readfirstlane_b32 s16, v3")
    e("s_waitcnt lgkmcnt(0)")
    srd(20,12,2048*1280,WS_XN); srd(24,12,16*400*1024,WS_W1); srd(36,12,2048*1280,WS_O); srd(40,12,2048*3072,WS_H)
    e("s_lshl_b32 s51, s16, 10"); e("s_mul_i32 s52, s15, 409600")
    e("v_lshlrev_b32 v24, 4, v4"); e("v_add_u32 v10, s51, v24"); e("v_mov_b32 v38, v10")
    e("s_lshl_b32 s17, s14, 3"); e("s_sub_u32 s18, s17, 1"); e("s_mul_i32 s18, s18, 20480"); e("v_add_u32 v9, s18, v24")
    e("s_lshl_b32 s18, s16, 1"); e("s_add_u32 s17, s17, s18"); e("s_mul_i32 s17, s17, 20480"); e("v_add_u32 v5, s17, v24")
    def stage(s):
        sl=s%NS
        for j in range(5):
            e(f"s_add_u32 s48, s52, {s*SB+j*4096}"); e(f"s_add_u32 m0, s51, {sl*SB+j*4096}"); e("s_nop 0")
            e(f"buffer_load_dwordx4 v10, s[24:27], s48 offen lds")
        e(f"s_mov_b32 s48, {1024*s}"); e(f"buffer_load_dwordx4 v[{72+4*sl}:{75+4*sl}], v9, s[20:23], s48 offen")
    stage(0)
    for i in range(2):
        for s in range(20):
            e(f"s_mov_b32 s48, {20480*i+1024*s}"); e(f"buffer_load_dwordx4 v[{96+80*i+4*s}:{99+80*i+4*s}], v5, s[20:23], s48 offen")
    stamp()
    for s in range(1,NS-1): stage(s)
    stamp()
    for i in range(168): e(f"v_accvgpr_write_b32 a{i}, 0")
    for s in range(20):
        sl=s%NS
        e(f"s_waitcnt vmcnt({6*min(NS-2,19-s)})")
        if s==0: stamp()
        e("s_barrier")
        if s in (0,10): stamp()
        if s>0:
            d = SB if sl else -(NS-1)*SB
            e(f"v_add_u32 v24, {d}, v24"); e(f"v_add_u32 v38, {d}, v38")
        def rd(t): e(f"ds_read_b128 a[{168+4*(t%8)}:{171+4*(t%8)}], v24 offset:{1024*t}")
        e("ds_read_b128 v[48:51], v38"); e("ds_read_b128 v[52:55], v24 offset:4096")
        for t in range(PD): rd(t)
        if s+NS-1<20: stage(s+NS-1)
        e(f"s_waitcnt lgkmcnt({PD})")
        hb=72+4*sl
        e(f"v_mfma_f32_16x16x32_bf16 a[160:163], v[48:51], v[{hb}:{hb+3}], a[160:163]")
        e(f"v_mfma_f32_16x16x32_bf16 a[164:167], v[52:55], v[{hb}:{hb+3}], a[164:167]")
        for t in range(20):
            if t+PD<20: rd(t+PD); e(f"s_waitcnt lgkmcnt({PD})")
            else: e(f"s_waitcnt lgkmcnt({19-t})")
            r=168+4*(t%8)
            for i in range(2):
                a=8*t+4*i
                e(f"v_mfma_f32_16x16x32_bf16 a[{a}:{a+3}], a[{r}:{r+3}], v[{96+80*i+4*s}:{99+80*i+4*s}], a[{a}:{a+3}]")
    e("s_nop 15"); stamp(); e("s_barrier")
    def put(a, addr, off):
        for r in range(4): e(f"v_accvgpr_read_b32 v{24+r}, a{a+r}")
        rnd2(24,25,28); rnd2(26,27,28)
        e(f"ds_write_b128 v{addr}, v[24:27] offset:{off}")
    e("v_lshl_add_u32 v4, v3, 5, v1"); e("v_add_u32 v4, 16, v4"); e(f"v_mul_u32_u24 v4, {AS}, v4"); e("v_lshl_add_u32 v4, v2, 4, v4")
    for t in range(8):
        for i in range(2): put(8*t+4*i,4,16*AS*i+64*t)
    e(f"v_mul_u32_u24 v5, {AS}, v1"); e("v_lshl_add_u32 v5, v2, 4, v5"); e("v_lshl_add_u32 v6, v3, 6, v5")
    put(160,6,0)
    e("s_cmp_lg_u32 s16, 0"); e("s_cbranch_scc1 k1_a"); put(164,5,256); lab("k1_a")
    e("s_lshl_b32 s17, s14, 3"); e("s_lshl_b32 s18, s16, 1"); e("s_add_u32 s17, s17, s18"); e("s_mul_i32 s17, s17, 49152"); e("s_mul_i32 s18, s15, 3072"); e("s_add_u32 s17, s17, s18")
    e("v_lshrrev_b32 v7, 1, v2"); e("v_lshlrev_b32 v7, 8, v7"); e("v_lshl_add_u32 v7, v1, 4, v7"); e("v_and_b32 v8, 1, v2"); e("v_lshl_add_u32 v7, v8, 3, v7"); e("v_add_u32 v7, s17, v7"); e("v_add_u32 v8, 49152, v7")
    for t in range(6):
        for i in range(2):
            o=32+16*i
            for r in range(4): e(f"v_accvgpr_read_b32 v{o+r}, a{8*(8+t)+4*i+r}"); e(f"v_accvgpr_read_b32 v{o+4+r}, a{8*(14+t)+4*i+r}")
            for r in range(0,8,2): rnd2(o+r,o+r+1,o+8)
            for r in range(4): e(f"v_mul_f32 v{o+8+r}, 0xbfb8aa3b, v{o+r}")
            for r in range(4): e(f"v_exp_f32 v{o+8+r}, v{o+8+r}")
            for r in range(4): e(f"v_add_f32 v{o+8+r}, 1.0, v{o+8+r}")
            for r in range(4): e(f"v_rcp_f32 v{o+8+r}, v{o+8+r}")
            for r in range(4): e(f"v_mul_f32 v{o+r}, v{o+r}, v{o+8+r}")
            rnd2(o,o+1,o+8); rnd2(o+2,o+3,o+8)
            for r in range(4): e(f"v_mul_f32 v{o+r}, v{o+r}, v{o+4+r}")
            e(f"v_cvt_pk_bf16_f32 v{o+12}, v{o}, v{o+1}"); e(f"v_cvt_pk_bf16_f32 v{o+13}, v{o+2}, v{o+3}")
            e(f"buffer_store_dwordx2 v[{o+12}:{o+13}], v{7+i}, s[40:43], 0 offen offset:{(t>>1)*1024+(t&1)*512}")
    stamp(); e("s_waitcnt lgkmcnt(0)"); e("s_barrier")
    e("v_and_b32 v4, 127, v0"); e("v_lshrrev_b32 v5, 7, v0")
    e("v_add_u32 v6, 16, v4"); e(f"v_mul_u32_u24 v6, {AS}, v6"); e("v_mul_u32_u24 v7, 80, v5"); e("v_add_u32 v6, v6, v7")
    e("s_lshl_b32 s17, s14, 7"); e("v_add_u32 v8, s17, v4")
    for c in range(5): e(f"ds_read_b128 v[{44+4*c}:{47+4*c}], v6 offset:{320+16*c}")
    for w in range(8):
        e(f"v_add_u32 v9, {-2*w*AS}, v6")
        for c in range(5): e(f"ds_read_b128 v[{64+4*c}:{67+4*c}], v9 offset:{16*c}")
        for c in range(5): e(f"ds_read_b128 v[{96+20*w+4*c}:{99+20*w+4*c}], v9 offset:{160+16*c}")
        e("s_waitcnt lgkmcnt(5)")
        e(f"v_mul_f32 v{32+w}, v44, v64")
        for d in range(1,20): e(f"v_fmac_f32 v{32+w}, v{44+d}, v{64+d}")
        rnd(32+w,40); e(f"v_mul_f32 v{32+w}, 0x3e64f92e, v{32+w}"); rnd(32+w,40)
        e(f"v_cmp_le_u32 vcc, {2*w}, v8"); e("v_mov_b32 v41, 0xce6e6b28"); e("s_nop 0"); e(f"v_cndmask_b32 v{32+w}, v41, v{32+w}, vcc")
    e("v_max_f32 v40, v32, v33")
    for w in range(2,8): e(f"v_max_f32 v40, v40, v{32+w}")
    e("v_mov_b32 v41, 0")
    for w in range(8):
        e(f"v_sub_f32 v{32+w}, v{32+w}, v40"); e(f"v_mul_f32 v{32+w}, 0x3fb8aa3b, v{32+w}"); e(f"v_exp_f32 v{32+w}, v{32+w}"); e("s_nop 0"); e(f"v_add_f32 v41, v41, v{32+w}")
    e("v_rcp_f32 v41, v41"); e("s_waitcnt lgkmcnt(0)")
    for w in range(8): e(f"v_mul_f32 v{32+w}, v{32+w}, v41"); rnd(32+w,40)
    for d in range(20):
        e(f"v_mul_f32 v{44+d}, v32, v{96+d}")
        for w in range(1,8): e(f"v_fmac_f32 v{44+d}, v{32+w}, v{96+20*w+d}")
    for d in range(10): e(f"v_cvt_pk_bf16_f32 v{64+d}, v{44+2*d}, v{45+2*d}")
    e("v_lshrrev_b32 v9, 4, v8"); e("v_mul_u32_u24 v9, 20480, v9"); e("v_and_b32 v7, 15, v8"); e("v_lshl_add_u32 v9, v7, 4, v9")
    e("v_mul_u32_u24 v7, 20, v5"); e("s_mul_i32 s18, s15, 40"); e("v_add_u32 v7, s18, v7")
    for c in range(5):
        e(f"v_add_u32 v10, {4*c}, v7"); e("v_lshrrev_b32 v11, 5, v10"); e("v_lshl_add_u32 v12, v11, 10, v9"); e("v_bfe_u32 v11, v10, 3, 2"); e("v_lshl_add_u32 v12, v11, 8, v12"); e("v_bfe_u32 v11, v10, 2, 1"); e("v_lshl_add_u32 v12, v11, 3, v12")
        e(f"buffer_store_dwordx2 v[{64+2*c}:{65+2*c}], v12, s[36:39], 0 offen")
    stamp(); stamp_out("k1",16)
    lab("k1_end"); e("s_endpgm")

def k2():
    NST=17
    L.append(".p2align 8"); lab("k2_kernel")
    e("s_cmp_ge_u32 s2, 256"); e("s_cbranch_scc1 k2_end")
    e("s_load_dwordx2 s[4:5], s[0:1], 0"); e("s_load_dwordx2 s[10:11], s[0:1], 56"); e("s_load_dwordx2 s[12:13], s[0:1], 72")
    stamp(); e("s_and_b32 s14, s2, 7"); e("s_lshl_b32 s14, s14, 2"); e("s_bfe_u32 s15, s2, 0x20003"); e("s_add_u32 s14, s14, s15"); e("s_lshr_b32 s15, s2, 5")
    e("v_and_b32 v1, 15, v0"); e("v_bfe_u32 v2, v0, 4, 2"); e("v_lshrrev_b32 v3, 6, v0"); e("v_and_b32 v4, 63, v0")
    e("s_nop 1"); e("v_readfirstlane_b32 s16, v3"); e("s_nop 3")
    e("s_and_b32 s52, s16, 1"); e("s_lshr_b32 s53, s16, 1"); e("s_lshl_b32 s51, s16, 10")
    e("s_waitcnt lgkmcnt(0)")
    srd(20,4,2048*1280); srd(24,12,8*68*5120,WS_W2); srd(32,10,2048*1280); srd(36,12,2048*1280,WS_O); srd(40,12,2048*3072,WS_H)
    e("v_lshlrev_b32 v24, 4, v4"); e("v_add_u32 v10, s51, v24")
    e("s_lshl_b32 s17, s14, 2"); e("s_lshl_b32 s18, s52, 1"); e("s_add_u32 s17, s17, s18")
    e("s_lshl_b32 s18, s53, 11")
    e("s_mul_i32 s19, s17, 20480"); e("s_add_u32 s19, s19, s18"); e("v_add_u32 v6, s19, v24"); e("v_add_u32 v7, 20480, v6")
    e("s_mul_i32 s19, s17, 49152"); e("s_add_u32 s19, s19, s18"); e("v_add_u32 v8, s19, v24"); e("v_add_u32 v9, 49152, v8")
    e("s_mul_i32 s54, s15, 348160")
    e("s_add_u32 s17, s17, s53"); e("s_lshl_b32 s17, s17, 4"); e("v_add_u32 v15, s17, v1"); e("v_mul_u32_u24 v15, 1280, v15"); e("v_lshl_add_u32 v15, v2, 3, v15"); e("s_mul_i32 s19, s15, 160"); e("v_add_u32 v15, s19, v15")
    for t in range(5): e(f"buffer_load_dwordx2 v[{200+2*t}:{201+2*t}], v15, s[20:23], 0 offen offset:{32*t}")
    def stage(s):
        sl=s%NS; ko=(s if s<5 else s-5)*4096
        for j in range(5):
            e(f"s_add_u32 s48, s54, {s*SB+j*4096}"); e(f"s_add_u32 m0, s51, {sl*SB+j*4096}"); e("s_nop 0")
            e(f"buffer_load_dwordx4 v10, s[24:27], s48 offen lds")
        e(f"s_mov_b32 s49, {ko}")
        for i in range(2):
            for q in range(2):
                a=96+16*sl+8*i+4*q
                e(f"buffer_load_dwordx4 v[{a}:{a+3}], v{(6 if s<5 else 8)+i}, s[{36 if s<5 else 40}:{39 if s<5 else 43}], s49 offen offset:{1024*q}")
    for s in range(NS-1): stage(s)
    e("s_mul_i32 s18, s53, 10240"); e("v_add_u32 v24, s18, v24")
    for i in range(80): e(f"v_accvgpr_write_b32 a{i}, 0")
    for s in range(NST):
        sl=s%NS
        e(f"s_waitcnt vmcnt({9*min(NS-2,NST-1-s)})"); e("s_barrier")
        if s>0: e(f"v_add_u32 v24, {SB if sl else -(NS-1)*SB}, v24")
        def rd(n): e(f"ds_read_b128 a[{168+4*(n%8)}:{171+4*(n%8)}], v24 offset:{1024*n}")
        for n in range(PD): rd(n)
        if s+NS-1<NST: stage(s+NS-1)
        ab=0 if s<5 else 40
        for n in range(10):
            if n+PD<10: rd(n+PD); e(f"s_waitcnt lgkmcnt({PD})")
            else: e(f"s_waitcnt lgkmcnt({9-n})")
            q,t=n//5,n%5; r=168+4*(n%8)
            for i in range(2):
                a=96+16*sl+8*i+4*q; c=ab+20*i+4*t
                e(f"v_mfma_f32_16x16x32_bf16 a[{c}:{c+3}], a[{r}:{r+3}], v[{a}:{a+3}], a[{c}:{c+3}]")
    e("s_nop 15"); stamp(); e("s_barrier")
    e("v_lshlrev_b32 v40, 4, v4"); e("v_mul_u32_u24 v41, 10240, v3"); e("v_add_u32 v41, v41, v40")
    e("v_xor_b32 v42, 2, v3"); e("v_mul_u32_u24 v42, 10240, v42"); e("v_add_u32 v42, v42, v40")
    e("s_cmp_eq_u32 s53, 0"); e("s_cbranch_scc1 k2_kp0")
    for p in range(2):
        for t in range(5): e(f"ds_write_b128 v41, a[{40*p+4*t}:{40*p+4*t+3}] offset:{1024*(5*p+t)}")
    for p in range(2):
        for t in range(5):
            for r in range(4): e(f"v_accvgpr_read_b32 v{96+20*p+4*t+r}, a{40*p+20+4*t+r}")
    e("s_branch k2_j")
    lab("k2_kp0")
    for p in range(2):
        for t in range(5): e(f"ds_write_b128 v41, a[{40*p+20+4*t}:{40*p+20+4*t+3}] offset:{1024*(5*p+t)}")
    for p in range(2):
        for t in range(5):
            for r in range(4): e(f"v_accvgpr_read_b32 v{96+20*p+4*t+r}, a{40*p+4*t+r}")
    lab("k2_j")
    e("s_waitcnt lgkmcnt(0)"); e("s_barrier")
    for n in range(10): e(f"ds_read_b128 v[{140+4*n}:{143+4*n}], v42 offset:{1024*n}")
    e("s_waitcnt lgkmcnt(0)")
    for n in range(40): e(f"v_add_f32 v{96+n}, v{96+n}, v{140+n}")
    for t in range(5):
        A=96+4*t; B=116+4*t
        rnd2(A,A+1,24); rnd2(A+2,A+3,24); rnd2(B,B+1,24); rnd2(B+2,B+3,24)
        for r in range(4):
            xr=200+2*t+(r>>1)
            e(f"v_lshlrev_b32 v24, 16, v{xr}" if r%2==0 else f"v_and_b32 v24, 0xffff0000, v{xr}")
            e(f"v_add_f32 v{A+r}, v{A+r}, v24")
        rnd2(A,A+1,24); rnd2(A+2,A+3,24)
        for r in range(4): e(f"v_add_f32 v{A+r}, v{A+r}, v{B+r}")
        e(f"v_cvt_pk_bf16_f32 v{180+2*t}, v{A}, v{A+1}"); e(f"v_cvt_pk_bf16_f32 v{181+2*t}, v{A+2}, v{A+3}")
        e(f"buffer_store_dwordx2 v[{180+2*t}:{181+2*t}], v15, s[32:35], 0 offen offset:{32*t}")
    stamp(); stamp_out("k2",16)
    lab("k2_end"); e("s_endpgm")

N="parallel_sum__sliding_local_dilated__glu_gated_swiglu__prompt"
hdr=open(f"cdna_kernels/{N}.s.ref").read().split("; Override")[0]
k0(); k1(); k2()
out=hdr+f"; @launch kernel=k0_kernel grid=({K0G},1,1) block=(256,1,1) lds=24576\n; @launch kernel=k1_kernel grid=(256,1,1) block=(256,1,1) lds={NS*SB}\n; @launch kernel=k2_kernel grid=(256,1,1) block=(256,1,1) lds={NS*SB}\n"
out+='.amdgcn_target "amdgcn-amd-amdhsa--gfx950"\n.text\n.globl k0_kernel\n.globl k1_kernel\n.globl k2_kernel\n.p2align 8\n'
out+="\n".join(L)+"\n.section .rodata,\"a\"\n"
for k,nv,ao in (("k0_kernel",56,56),("k1_kernel",512,256),("k2_kernel",512,256)):
    out+=f""".p2align 6
.amdhsa_kernel {k}
  .amdhsa_next_free_vgpr {nv}
  .amdhsa_next_free_sgpr 102
  .amdhsa_accum_offset {ao}
  .amdhsa_group_segment_fixed_size 0
  .amdhsa_kernarg_size 80
  .amdhsa_user_sgpr_count 2
  .amdhsa_user_sgpr_kernarg_segment_ptr 1
  .amdhsa_system_sgpr_workgroup_id_x 1
.end_amdhsa_kernel
"""
open(os.environ.get("OUT",f"cdna_kernels/{N}.s"),"w").write(out)
```

```python
import os
L=[]
def e(s): L.append("    "+s)
def lab(s): L.append(s+":")
WS_O=0; WS_H=4<<20; WS_XN=16<<20; WS_W1=20<<20; WS_W2=28<<20
EXP=int(os.environ.get('EXP','0')); STAMP=int(os.environ.get('STAMP','0')); _st=[0]
def stamp():
    if not STAMP: return
    i=_st[0]; _st[0]+=1
    e(f"s_memtime s[{60+2*i}:{61+2*i}]")
def stamp_out(n,wsg):
    if not STAMP: return
    k=_st[0]; _st[0]=0
    e("s_waitcnt lgkmcnt(0)"); e("s_cmp_lg_u32 s2, 0"); e(f"s_cbranch_scc1 {n}_nost")
    e("s_load_dwordx2 s[88:89], s[0:1], 64"); e("s_waitcnt lgkmcnt(0)"); e("s_mov_b32 s90, 256"); e("s_mov_b32 s91, 0x00020000")
    e(f"s_lshl_b32 s94, s{wsg}, 6"); e("v_mov_b32 v1, 0")
    for i in range(k):
        e(f"s_sub_u32 s95, s{60+2*i}, s60"); e("v_mov_b32 v2, s95"); e(f"buffer_store_dword v2, v1, s[88:91], s94 offen offset:{4*i}")
    lab(f"{n}_nost")
def srd(d, lo, nbytes, off=0):
    if off:
        e(f"s_add_u32 s{d}, s{lo}, {off}"); e(f"s_addc_u32 s{d+1}, s{lo+1}, 0")
    else:
        e(f"s_mov_b32 s{d}, s{lo}"); e(f"s_mov_b32 s{d+1}, s{lo+1}")
    e(f"s_mov_b32 s{d+2}, {nbytes}"); e(f"s_mov_b32 s{d+3}, 0x00020000")
def rnd(v, t):
    e(f"v_cvt_pk_bf16_f32 v{t}, v{v}, v{v}"); e(f"v_lshlrev_b32 v{v}, 16, v{t}")
def rnd2(a,b,t):
    e(f"v_cvt_pk_bf16_f32 v{t}, v{a}, v{b}"); e(f"v_lshlrev_b32 v{a}, 16, v{t}"); e(f"v_and_b32 v{b}, 0xffff0000, v{t}")
NS=6; SB=20480; PD=6; PF=int(os.environ.get('PF','0')); PFA=int(os.environ.get('PFA','1')); ROT1=int(os.environ.get('ROT1','5'))

def magic(d): return (1<<32)//d+1
def divc(q,r,x,d,t):
    e(f"s_mov_b32 s30, {magic(d)}"); e(f"v_mul_hi_u32 v{q}, v{x}, s30"); e(f"v_mul_u32_u24 v{t}, {d}, v{q}"); e(f"v_sub_u32 v{r}, v{x}, v{t}")
JOBS=[(8,1920,80,0),(32,1536,80,1),(40,1536,80,2),(16,640,80,3),(48,640,192,4)]
def k0():
    lab("k0_kernel")
    e("s_cmp_ge_u32 s2, 512"); e("s_cbranch_scc1 k0_rep")
    e("s_load_dwordx2 s[4:5], s[0:1], 0"); e("s_load_dwordx2 s[12:13], s[0:1], 72")
    e("v_lshrrev_b32 v3, 6, v0"); e("v_and_b32 v1, 63, v0"); e("s_lshl_b32 s14, s2, 2"); e("v_add_u32 v3, s14, v3")
    e("v_mul_u32_u24 v4, 1280, v3"); e("v_lshl_add_u32 v4, v1, 2, v4")
    e("v_lshrrev_b32 v5, 4, v3"); e("v_mul_u32_u24 v5, 20480, v5"); e("v_and_b32 v6, 15, v3"); e("v_lshl_add_u32 v5, v6, 4, v5")
    e("v_lshrrev_b32 v6, 4, v1"); e("v_lshl_add_u32 v5, v6, 10, v5"); e("v_bfe_u32 v6, v1, 2, 2"); e("v_lshl_add_u32 v5, v6, 8, v5"); e("v_and_b32 v6, 3, v1"); e("v_lshl_add_u32 v5, v6, 2, v5")
    e("s_waitcnt lgkmcnt(0)")
    srd(20,4,2048*1280); srd(24,12,2048*1280,WS_XN)
    for i in range(5): e(f"buffer_load_dword v{10+i}, v4, s[20:23], 0 offen offset:{256*i}")
    e("v_mov_b32 v20, 0"); e("v_mov_b32 v21, 0"); e("v_mov_b32 v22, 0x3f803f80")
    e("s_waitcnt vmcnt(0)")
    for i in range(5): e(f"v_dot2c_f32_bf16 v20, v{10+i}, v22"); e(f"v_dot2c_f32_bf16 v21, v{10+i}, v{10+i}")
    for m in (1,2,4,8,16,32):
        e(f"v_xor_b32 v23, {m}, v1"); e("v_lshlrev_b32 v23, 2, v23"); e("s_nop 2")
        e("ds_bpermute_b32 v24, v23, v20"); e("ds_bpermute_b32 v25, v23, v21"); e("s_waitcnt lgkmcnt(0)")
        e("v_add_f32 v20, v20, v24"); e("v_add_f32 v21, v21, v25")
    e("v_mul_f32 v20, 0x3acccccd, v20"); e("v_mul_f32 v21, 0x3acccccd, v21")
    e("v_fma_f32 v21, -v20, v20, v21"); e("v_max_f32 v21, 0, v21"); rnd(20,23); rnd(21,23)
    e("v_add_f32 v21, 0x3727c5ac, v21"); rnd(21,23); e("v_sqrt_f32 v21, v21"); e("s_nop 0"); rnd(21,23); e("v_rcp_f32 v21, v21"); e("s_nop 0")
    for i in range(5):
        r=10+i
        e(f"v_lshlrev_b32 v24, 16, v{r}"); e(f"v_and_b32 v25, 0xffff0000, v{r}")
        e("v_sub_f32 v24, v24, v20"); e("v_sub_f32 v25, v25, v20"); rnd2(24,25,26)
        e("v_mul_f32 v24, v24, v21"); e("v_mul_f32 v25, v25, v21"); e(f"v_cvt_pk_bf16_f32 v{r}, v24, v25")
        e(f"s_mov_b32 s31, {4096*i}"); e(f"buffer_store_dword v{r}, v5, s[24:27], s31 offen")
    e("s_endpgm")
    lab("k0_rep")
    e("s_cmp_ge_u32 s2, 832"); e("s_cbranch_scc1 k0_rep2")
    e("s_load_dwordx2 s[6:7], s[0:1], 8"); e("s_load_dwordx4 s[8:11], s[0:1], 32"); e("s_load_dwordx2 s[12:13], s[0:1], 72")
    e("s_sub_u32 s14, s2, 512"); e("s_mul_hi_u32 s15, s14, 214748365"); e("s_mul_i32 s17, s15, 20"); e("s_sub_u32 s17, s14, s17")
    e("v_and_b32 v1, 15, v0"); e("v_bfe_u32 v2, v0, 4, 2"); e("v_lshrrev_b32 v3, 6, v0"); e("v_and_b32 v4, 63, v0")
    e("s_nop 1"); e("v_readfirstlane_b32 s16, v3")
    e("s_waitcnt lgkmcnt(0)")
    srd(24,6,640*3840); srd(28,8,640*3072); srd(32,10,640*3072); srd(36,12,16*400*1024,WS_W1)
    e("s_cmp_lt_u32 s16, 2")
    for i in range(4): e(f"s_cselect_b32 s{44+i}, s{28+i}, s{32+i}")
    e("s_mul_i32 s19, s15, 80")
    e("v_and_b32 v6, 15, v0"); e("v_lshrrev_b32 v7, 4, v0")
    e("v_cmp_gt_u32 vcc, 5, v6"); e("v_mov_b32 v8, 2480"); e("v_mov_b32 v9, 1280"); e("s_nop 0"); e("v_cndmask_b32 v8, v8, v9, vcc")
    e("v_cmp_gt_u32 vcc, 10, v6"); e("v_mov_b32 v9, -160"); e("s_nop 1"); e("v_cndmask_b32 v8, v9, v8, vcc")
    e("v_cmp_gt_u32 vcc, 15, v6"); e("v_mov_b32 v9, 0x40000000"); e("s_nop 1"); e("v_cndmask_b32 v8, v9, v8, vcc")
    e("v_lshl_add_u32 v8, v6, 4, v8"); e("v_add_u32 v8, s19, v8")
    e("v_mul_u32_u24 v9, 3840, v7"); e("v_add_u32 v10, v8, v9"); e("v_add_u32 v11, 61440, v10")
    e("v_mul_u32_u24 v15, 656, v7"); e("v_lshl_add_u32 v15, v6, 4, v15"); e("v_add_u32 v16, 10496, v15")
    e("s_mul_i32 s19, s15, 192")
    for (j,expr) in ((2,"v_mov_b32 v6, v0"),(3,None),(4,"v_add_u32 v6, 128, v0")):
        if expr: e(expr)
        else:
            e("v_cmp_gt_u32 vcc, 128, v0"); e("v_add_u32 v6, 256, v0"); e("v_subrev_u32 v7, 128, v0"); e("s_nop 0"); e("v_cndmask_b32 v6, v7, v6, vcc")
        e("v_mul_u32_u24 v7, 0x5556, v6"); e("v_lshrrev_b32 v7, 18, v7"); e("v_mul_u32_u24 v8, 12, v7"); e("v_sub_u32 v8, v6, v8")
        e(f"v_mul_u32_u24 v9, 3072, v7"); e("v_lshl_add_u32 v9, v8, 4, v9"); e(f"v_add_u32 v{10+j}, s19, v9")
        e("v_mul_u32_u24 v9, 656, v7"); e("v_lshl_add_u32 v9, v8, 4, v9")
        if j==2: e("v_add_u32 v17, 256, v9")
        elif j==4: e("v_add_u32 v19, 448, v9")
        else:
            e("v_add_u32 v7, 256, v9"); e("v_add_u32 v9, 448, v9"); e("v_cndmask_b32 v18, v9, v7, vcc")
    srds=[24,24,28,44,32]
    e("s_mul_i32 s48, s17, 122880"); e("s_mul_i32 s49, s17, 98304")
    for j in range(5): e(f"buffer_load_dwordx4 v[{32+4*j}:{35+4*j}], v{10+j}, s[{srds[j]}:{srds[j]+3}], s{48 if j<2 else 49} offen")
    e("v_lshrrev_b32 v20, 2, v1"); e("v_lshl_add_u32 v20, v2, 3, v20"); e("v_mul_u32_u24 v20, 656, v20"); e("v_and_b32 v22, 3, v1"); e("v_lshl_add_u32 v20, v22, 3, v20"); e("v_lshl_add_u32 v20, v3, 5, v20")
    e("s_mul_i32 s18, s14, 20480"); e("v_lshlrev_b32 v21, 4, v4"); e("v_lshl_add_u32 v21, v3, 10, v21"); e("v_add_u32 v21, s18, v21")
    e("s_waitcnt vmcnt(0)")
    for j in range(5): e(f"ds_write_b128 v{15+j}, v[{32+4*j}:{35+4*j}]")
    e("s_waitcnt lgkmcnt(0)"); e("s_barrier")
    for j in range(5):
        e(f"ds_read_b64_tr_b16 v[{32+4*j}:{33+4*j}], v20 offset:{128*j}"); e(f"ds_read_b64_tr_b16 v[{34+4*j}:{35+4*j}], v20 offset:{128*j+4*656}")
    e("s_waitcnt lgkmcnt(0)")
    for j in range(5): e(f"s_mov_b32 s31, {4096*j}"); e(f"buffer_store_dwordx4 v[{32+4*j}:{35+4*j}], v21, s[36:39], s31 offen")
    e("s_endpgm")
    lab("k0_rep2")
    e("s_cmp_ge_u32 s2, 968"); e("s_cbranch_scc1 k0_fin")
    e("s_load_dwordx2 s[6:7], s[0:1], 16"); e("s_load_dwordx2 s[8:9], s[0:1], 48"); e("s_load_dwordx2 s[12:13], s[0:1], 72")
    e("s_sub_u32 s14, s2, 832"); e("s_mul_hi_u32 s15, s14, 252645136"); e("s_mul_i32 s17, s15, 17"); e("s_sub_u32 s17, s14, s17")
    e("v_and_b32 v1, 15, v0"); e("v_bfe_u32 v2, v0, 4, 2"); e("v_lshrrev_b32 v3, 6, v0"); e("v_and_b32 v4, 63, v0")
    e("s_waitcnt lgkmcnt(0)")
    srd(24,6,640*1280); srd(28,8,1536*1280); srd(36,12,8*68*5120,WS_W2)
    e("s_sub_u32 s18, s17, 5"); e("s_cmp_lt_u32 s17, 5")
    for i in range(4): e(f"s_cselect_b32 s{44+i}, s{24+i}, s{28+i}")
    e("s_cselect_b32 s18, s17, s18"); e("s_mul_i32 s48, s18, 163840")
    e("s_mul_i32 s19, s15, 160")
    for j in range(5):
        e(f"v_add_u32 v8, {256*j}, v0"); e("v_mul_u32_u24 v9, 0x199a, v8"); e("v_lshrrev_b32 v9, 16, v9"); e("v_mul_u32_u24 v10, 10, v9"); e("v_sub_u32 v10, v8, v10")
        e("v_mul_u32_u24 v11, 1280, v9"); e("v_lshl_add_u32 v11, v10, 4, v11"); e("v_add_u32 v11, s19, v11")
        e(f"buffer_load_dwordx4 v[{32+4*j}:{35+4*j}], v11, s[44:47], s48 offen")
        e("v_mul_u32_u24 v11, 176, v9"); e(f"v_lshl_add_u32 v{15+j}, v10, 4, v11")
    e("v_lshrrev_b32 v20, 2, v1"); e("v_lshl_add_u32 v20, v2, 3, v20"); e("v_lshl_add_u32 v20, v3, 5, v20"); e("v_mul_u32_u24 v20, 176, v20"); e("v_and_b32 v22, 3, v1"); e("v_lshl_add_u32 v20, v22, 3, v20")
    e("s_mul_i32 s18, s14, 20480"); e("v_lshlrev_b32 v21, 4, v4"); e("v_mul_u32_u24 v22, 5120, v3"); e("v_add_u32 v21, v21, v22"); e("v_add_u32 v21, s18, v21")
    e("s_waitcnt vmcnt(0)")
    for j in range(5): e(f"ds_write_b128 v{15+j}, v[{32+4*j}:{35+4*j}]")
    e("s_waitcnt lgkmcnt(0)"); e("s_barrier")
    for j in range(5):
        e(f"ds_read_b64_tr_b16 v[{32+4*j}:{33+4*j}], v20 offset:{32*j}"); e(f"ds_read_b64_tr_b16 v[{34+4*j}:{35+4*j}], v20 offset:{32*j+4*176}")
    e("s_waitcnt lgkmcnt(0)")
    for j in range(5): e(f"s_mov_b32 s31, {1024*j}"); e(f"buffer_store_dwordx4 v[{32+4*j}:{35+4*j}], v21, s[36:39], s31 offen")
    lab("k0_fin")
    e("s_endpgm")
    global K0G; K0G=968

class LQ:
    def __init__(s): s.n=0; s.done=0
    def issue(s): s.n+=1; return s.n
    def wait(s,i):
        if i>s.done:
            assert s.n-i<=15
            e(f"s_waitcnt lgkmcnt({s.n-i})"); s.done=i
class VQ:
    def __init__(s): s.n=0; s.done=0
    def issue(s): s.n+=1; return s.n
    def wait(s,i):
        if i>s.done:
            e(f"s_waitcnt vmcnt({min(63,s.n-i)})"); s.done=i
def k1():
    AS=528; AC=88; HA=248
    L.append(".p2align 8"); lab("k1_kernel")
    e("s_cmp_ge_u32 s2, 256"); e("s_cbranch_scc1 k1_end")
    e("s_load_dwordx2 s[12:13], s[0:1], 72")
    stamp(); e("s_lshr_b32 s14, s2, 4"); e("s_and_b32 s15, s2, 15")
    e("v_and_b32 v1, 15, v0"); e("v_bfe_u32 v2, v0, 4, 2"); e("v_lshrrev_b32 v3, 6, v0"); e("v_and_b32 v4, 63, v0")
    e("s_nop 1"); e("v_readfirstlane_b32 s16, v3")
    e("s_waitcnt lgkmcnt(0)")
    srd(20,12,2048*1280,WS_XN); srd(24,12,16*400*1024,WS_W1); srd(36,12,2048*1280,WS_O); srd(40,12,2048*3072,WS_H)
    e("s_lshl_b32 s51, s16, 10"); e("s_mul_i32 s52, s15, 409600")
    e("v_lshlrev_b32 v24, 4, v4"); e("v_add_u32 v25, 61440, v24"); e("v_add_u32 v10, s51, v24"); e("v_add_u32 v27, 61440, v10")
    e("s_lshl_b32 s17, s14, 3"); e("s_sub_u32 s18, s17, 1"); e("s_mul_i32 s18, s18, 20480"); e("v_add_u32 v9, s18, v24")
    e("s_lshl_b32 s18, s16, 1"); e("s_add_u32 s17, s17, s18"); e("s_mul_i32 s17, s17, 20480"); e("v_add_u32 v5, s17, v24"); e("v_add_u32 v6, 20480, v5")
    def G(s):
        sl=s%NS; r=[]
        def dma(j):
            e(f"s_add_u32 m0, s51, {sl*SB+j*4096}"); e(f"s_add_u32 s48, s52, {s*SB+j*4096}")
            e(f"buffer_load_dwordx4 v10, s[24:27], s48 offen lds")
        def al(i):
            if i==0: e(f"s_mov_b32 s49, {s*1024}")
            a=40+12*sl+4*i
            e(f"buffer_load_dwordx4 a[{a}:{a+3}], v{(5,6,9)[i]}, s[20:23], s49 offen")
        return [lambda j=j:dma(j) for j in range(5)]+[lambda i=i:al(i) for i in range(3)]
    for s in range(NS-1):
        for f in G(s): f()
    stamp()
    q=LQ(); fr={}; hf={}
    def rd(s,t):
        sl=s%NS; r=4*((20*s+t)%8)
        e(f"ds_read_b128 a[{r}:{r+3}], v{24+sl//3} offset:{(sl%3)*SB+1024*t}"); fr[(s,t)]=q.issue()
    def rdh(s,k):
        sl=s%NS
        if k==0: e(f"ds_read_b128 a[32:35], v{(10,27)[sl//3]} offset:{(sl%3)*SB}")
        else: e(f"ds_read_b128 a[36:39], v{24+sl//3} offset:{(sl%3)*SB+4096}")
        hf[(s,k)]=q.issue()
    e(f"s_waitcnt vmcnt({8*(NS-2)})"); stamp(); e("s_barrier")
    for t in range(PD): rd(0,t)
    rdh(0,0); rdh(0,1)
    for s in range(20):
        sl=s%NS; ab=40+12*sl
        if s<19:
            e(f"s_waitcnt vmcnt({8*(min(s+NS-2,19)-(s+1))})"); e("s_barrier")
        if s in (0,10): stamp()
        g=G(s+NS-1) if s+NS-1<20 and not (EXP&1) else []
        for t in range(20):
            f=t+PD
            if f<20: rd(s,f)
            elif s<19: rd(s+1,f-20)
            if s<19 and t in (16,17): rdh(s+1,t-16)
            q.wait(fr[(s,t)])
            r=4*((20*s+t)%8)
            for i in range(2):
                a=AC+8*t+4*i
                e(f"v_mfma_f32_16x16x32_bf16 v[{a}:{a+3}], a[{r}:{r+3}], a[{ab+4*i}:{ab+4*i+3}], "+(f"v[{a}:{a+3}]" if s else "0"))
            if t==4:
                q.wait(hf[(s,1)])
                for k in range(2):
                    a=HA+4*k
                    e(f"v_mfma_f32_16x16x32_bf16 v[{a}:{a+3}], a[{32+4*k}:{35+4*k}], a[{ab+8}:{ab+11}], "+(f"v[{a}:{a+3}]" if s else "0"))
            if t%2==1 and g: g.pop(0)()
        assert not g
    e("s_nop 15"); stamp(); e("s_barrier")
    def put(a, addr, off):
        rnd2(a,a+1,28); rnd2(a+2,a+3,29)
        e(f"ds_write_b128 v{addr}, v[{a}:{a+3}] offset:{off}")
    e("v_lshl_add_u32 v4, v3, 5, v1"); e("v_add_u32 v4, 16, v4"); e(f"v_mul_u32_u24 v4, {AS}, v4"); e("v_lshl_add_u32 v4, v2, 4, v4")
    for t in range(8):
        for i in range(2): put(AC+8*t+4*i,4,16*AS*i+64*t)
    e(f"v_mul_u32_u24 v5, {AS}, v1"); e("v_lshl_add_u32 v5, v2, 4, v5"); e("v_lshl_add_u32 v6, v3, 6, v5")
    put(HA,6,0)
    e("s_cmp_lg_u32 s16, 0"); e("s_cbranch_scc1 k1_a"); put(HA+4,5,256); lab("k1_a")
    e("s_lshl_b32 s17, s14, 3"); e("s_lshl_b32 s18, s16, 1"); e("s_add_u32 s17, s17, s18"); e("s_mul_i32 s17, s17, 49152"); e("s_mul_i32 s18, s15, 3072"); e("s_add_u32 s17, s17, s18")
    e("v_lshrrev_b32 v7, 1, v2"); e("v_lshlrev_b32 v7, 8, v7"); e("v_lshl_add_u32 v7, v1, 4, v7"); e("v_and_b32 v8, 1, v2"); e("v_lshl_add_u32 v7, v8, 3, v7"); e("v_add_u32 v7, s17, v7"); e("v_add_u32 v8, 49152, v7")
    e("s_mov_b32 s54, 0xbfb8aa3b"); e("s_mov_b32 s55, 0xbfb8aa3b"); e("s_mov_b32 s56, 1.0"); e("s_mov_b32 s57, 1.0"); e("s_mov_b32 s58, 0xffff0000")
    for t in range(6):
        for i in range(2):
            Gt=AC+8*(8+t)+4*i; U=AC+8*(14+t)+4*i; T=32+8*i
            for k,R in enumerate((Gt,Gt+2,U,U+2)): e(f"v_cvt_pk_bf16_f32 v{T+k}, v{R}, v{R+1}")
            for k,R in enumerate((Gt,Gt+2,U,U+2)): e(f"v_lshlrev_b32 v{R}, 16, v{T+k}"); e(f"v_and_b32 v{R+1}, s58, v{T+k}")
            for k in (0,2): e(f"v_pk_mul_f32 v[{T+k}:{T+k+1}], v[{Gt+k}:{Gt+k+1}], s[54:55]")
            for k in range(4): e(f"v_exp_f32 v{T+k}, v{T+k}")
            for k in (0,2): e(f"v_pk_add_f32 v[{T+k}:{T+k+1}], v[{T+k}:{T+k+1}], s[56:57]")
            for k in range(4): e(f"v_rcp_f32 v{T+k}, v{T+k}")
            for k in (0,2): e(f"v_pk_mul_f32 v[{Gt+k}:{Gt+k+1}], v[{Gt+k}:{Gt+k+1}], v[{T+k}:{T+k+1}]")
            for k in (0,2): e(f"v_cvt_pk_bf16_f32 v{T+4+k}, v{Gt+k}, v{Gt+k+1}")
            for k in (0,2): e(f"v_lshlrev_b32 v{Gt+k}, 16, v{T+4+k}"); e(f"v_and_b32 v{Gt+k+1}, s58, v{T+4+k}")
            for k in (0,2): e(f"v_pk_mul_f32 v[{Gt+k}:{Gt+k+1}], v[{Gt+k}:{Gt+k+1}], v[{U+k}:{U+k+1}]")
            e(f"v_cvt_pk_bf16_f32 v{T+6}, v{Gt}, v{Gt+1}"); e(f"v_cvt_pk_bf16_f32 v{T+7}, v{Gt+2}, v{Gt+3}")
            e(f"buffer_store_dwordx2 v[{T+6}:{T+7}], v{7+i}, s[40:43], 0 offen offset:{(t>>1)*1024+(t&1)*512}")
    stamp(); e("s_waitcnt lgkmcnt(0)"); e("s_barrier")
    e("v_and_b32 v4, 127, v0"); e("v_lshrrev_b32 v5, 7, v0")
    e("v_add_u32 v6, 16, v4"); e(f"v_mul_u32_u24 v6, {AS}, v6"); e("v_mul_u32_u24 v7, 80, v5"); e("v_add_u32 v6, v6, v7")
    e(f"v_add_u32 v9, {-14*AS}, v6")
    e("s_lshl_b32 s17, s14, 7"); e("v_add_u32 v8, s17, v4")
    q=LQ(); kr={}; vr={}
    for c in range(5): e(f"ds_read_b128 v[{44+4*c}:{47+4*c}], v6 offset:{320+16*c}"); q.issue()
    def rk(w,o,d):
        for c in range(5): e(f"ds_read_b128 v[{96+20*w+4*c}:{99+20*w+4*c}], v9 offset:{(14-2*w)*AS+o+16*c}"); d[w]=q.issue()
    rk(0,0,kr); rk(1,0,kr)
    for w in range(8):
        q.wait(kr[w]); K=96+20*w
        e(f"v_pk_mul_f32 v[40:41], v[44:45], v[{K}:{K+1}]"); e(f"v_pk_mul_f32 v[42:43], v[46:47], v[{K+2}:{K+3}]")
        for d in range(4,20,2): e(f"v_pk_fma_f32 v[{40+(d&2)}:{41+(d&2)}], v[{44+d}:{45+d}], v[{K+d}:{K+d+1}], v[{40+(d&2)}:{41+(d&2)}]")
        if w+2<8: rk(w+2,0,kr)
        rk(w,160,vr)
        e("v_pk_add_f32 v[40:41], v[40:41], v[42:43]"); e(f"v_add_f32 v{32+w}, v40, v41")
        rnd(32+w,40); e(f"v_mul_f32 v{32+w}, 0x3e64f92e, v{32+w}"); rnd(32+w,40)
        e(f"v_cmp_le_u32 vcc, {2*w}, v8"); e("v_mov_b32 v41, 0xce6e6b28"); e("s_nop 0"); e(f"v_cndmask_b32 v{32+w}, v41, v{32+w}, vcc")
    e("v_max3_f32 v40, v32, v33, v34"); e("v_max3_f32 v40, v40, v35, v36"); e("v_max3_f32 v40, v40, v37, v38"); e("v_max_f32 v40, v40, v39")
    e("v_mov_b32 v41, 0")
    for w in range(8): e(f"v_sub_f32 v{32+w}, v{32+w}, v40"); e(f"v_mul_f32 v{32+w}, 0x3fb8aa3b, v{32+w}")
    for w in range(8): e(f"v_exp_f32 v{32+w}, v{32+w}")
    e("s_nop 0")
    for w in range(8): e(f"v_add_f32 v41, v41, v{32+w}")
    e("v_rcp_f32 v41, v41"); e("s_nop 0")
    for w in range(8): e(f"v_mul_f32 v{32+w}, v{32+w}, v41")
    for w in range(0,8,2): rnd2(32+w,33+w,40)
    for w in range(8):
        q.wait(vr[w]); V=96+20*w; P=32+(w&~1); os="op_sel:[0,0,0] op_sel_hi:[0,1,1]" if w%2==0 else "op_sel:[1,0,0] op_sel_hi:[1,1,1]"
        for d in range(0,20,2):
            if w==0: e(f"v_pk_mul_f32 v[{44+d}:{45+d}], v[{P}:{P+1}], v[{V+d}:{V+d+1}] op_sel:[0,0] op_sel_hi:[0,1]")
            else: e(f"v_pk_fma_f32 v[{44+d}:{45+d}], v[{P}:{P+1}], v[{V+d}:{V+d+1}], v[{44+d}:{45+d}] {os}")
    for d in range(10): e(f"v_cvt_pk_bf16_f32 v{64+d}, v{44+2*d}, v{45+2*d}")
    e("v_lshrrev_b32 v9, 4, v8"); e("v_mul_u32_u24 v9, 20480, v9"); e("v_and_b32 v7, 15, v8"); e("v_lshl_add_u32 v9, v7, 4, v9")
    e("v_mul_u32_u24 v7, 20, v5"); e("s_mul_i32 s18, s15, 40"); e("v_add_u32 v7, s18, v7")
    for c in range(5):
        e(f"v_add_u32 v10, {4*c}, v7"); e("v_lshrrev_b32 v11, 5, v10"); e("v_lshl_add_u32 v12, v11, 10, v9"); e("v_bfe_u32 v11, v10, 3, 2"); e("v_lshl_add_u32 v12, v11, 8, v12"); e("v_bfe_u32 v11, v10, 2, 1"); e("v_lshl_add_u32 v12, v11, 3, v12")
        e(f"buffer_store_dwordx2 v[{64+2*c}:{65+2*c}], v12, s[36:39], 0 offen")
    stamp(); stamp_out("k1",16)
    lab("k1_end"); e("s_endpgm")

def k2():
    NST=17; AC=96
    L.append(".p2align 8"); lab("k2_kernel")
    e("s_cmp_ge_u32 s2, 256"); e("s_cbranch_scc1 k2_end")
    e("s_load_dwordx2 s[4:5], s[0:1], 0"); e("s_load_dwordx2 s[10:11], s[0:1], 56"); e("s_load_dwordx2 s[12:13], s[0:1], 72")
    stamp(); e("s_and_b32 s14, s2, 7"); e("s_lshl_b32 s14, s14, 2"); e("s_bfe_u32 s15, s2, 0x20003"); e("s_add_u32 s14, s14, s15"); e("s_lshr_b32 s15, s2, 5")
    if EXP&4: e("s_mov_b32 s14, 0"); e("s_mov_b32 s15, 0")
    if EXP&128: e("s_cmp_ge_u32 s2, 8"); e("s_cbranch_scc1 k2_end")
    e("v_and_b32 v1, 15, v0"); e("v_bfe_u32 v2, v0, 4, 2"); e("v_lshrrev_b32 v3, 6, v0"); e("v_and_b32 v4, 63, v0")
    e("s_nop 1"); e("v_readfirstlane_b32 s16, v3"); e("s_nop 3")
    e("s_and_b32 s52, s16, 1"); e("s_lshr_b32 s53, s16, 1"); e("s_lshl_b32 s51, s16, 10")
    e("s_waitcnt lgkmcnt(0)")
    srd(20,4,2048*1280); srd(24,12,8*68*5120,WS_W2); srd(32,10,2048*1280); srd(36,12,2048*1280,WS_O); srd(40,12,2048*3072,WS_H)
    e("v_lshlrev_b32 v24, 4, v4"); e("v_add_u32 v10, s51, v24")
    e("s_lshl_b32 s17, s14, 2"); e("s_lshl_b32 s18, s52, 1"); e("s_add_u32 s17, s17, s18")
    e("s_lshl_b32 s18, s53, 11")
    e("s_mul_i32 s19, s17, 20480"); e("s_add_u32 s19, s19, s18"); e("v_add_u32 v6, s19, v24"); e("v_add_u32 v7, 20480, v6")
    e("s_mul_i32 s19, s17, 49152"); e("s_add_u32 s19, s19, s18"); e("v_add_u32 v8, s19, v24"); e("v_add_u32 v9, 49152, v8")
    e("s_mul_i32 s54, s15, 348160")
    e("s_add_u32 s17, s17, s53"); e("s_lshl_b32 s17, s17, 4"); e("v_add_u32 v15, s17, v1"); e("v_mul_u32_u24 v15, 1280, v15"); e("v_lshl_add_u32 v15, v2, 3, v15"); e("s_mul_i32 s19, s15, 160"); e("v_add_u32 v15, s19, v15")
    vq=VQ(); gl={}
    def G(s):
        sl=s%NS; ko=(s if s<5 else s-5)*4096
        def dma(j):
            e(f"s_add_u32 m0, s51, {sl*SB+j*4096}"); e(f"s_add_u32 s48, s54, {s*SB+j*4096}")
            e(f"buffer_load_dwordx4 v10, s[24:27], s48 offen lds"); gl[s]=vq.issue()
        def al(n):
            i,qq=n>>1,n&1
            if n==0: e(f"s_mov_b32 s49, {ko}")
            a=40+16*sl+8*i+4*qq
            e(f"buffer_load_dwordx4 a[{a}:{a+3}], v{(6 if s<5 else 8)+i}, s[{36 if s<5 else 40}:{39 if s<5 else 43}], s49 offen offset:{1024*qq}"); gl[s]=vq.issue()
        return [lambda j=j:dma(j) for j in range(5)]+[lambda n=n:al(n) for n in range(4)]
    if EXP&2048:
        for r in (24,36,40): e(f"s_add_u32 s{r}, s{r}, {32<<20}"); e(f"s_addc_u32 s{r+1}, s{r+1}, 0")
    if EXP&1024: e("s_mov_b32 s59, 0"); lab("k2_rep")
    for s in range(NS-1):
        for f in G(s): f()
        if s==PFA and PF:
            e("v_lshlrev_b32 v26, 7, v4"); e("s_lshl_b32 s18, s16, 13"); e("s_add_u32 s18, s18, s54")
            e("s_lshl_b32 s19, s14, 2"); e("s_add_u32 s19, s19, s16"); e("s_mul_i32 s19, s19, 49152")
            for i in range(8):
                if 4*i+3<30 or True:
                    e(f"s_add_u32 s48, s18, {5*SB+32768*i}"); e("buffer_load_dword v27, v26, s[24:27], s48 offen"); vq.issue()
                if i<6:
                    e(f"s_add_u32 s48, s19, {8192*i}"); e("buffer_load_dword v27, v26, s[40:43], s48 offen"); vq.issue()
    e("s_mul_i32 s18, s53, 10240"); e("v_add_u32 v24, s18, v24"); e("v_add_u32 v25, 61440, v24")
    q=LQ(); fr={}
    def rd(s,n):
        sl=s%NS; r=4*((10*s+n)%8)
        if EXP&256: fr[(s,n)]=0; return
        e(f"ds_read_b128 a[{r}:{r+3}], v{24+sl//3} offset:{(sl%3)*SB+1024*n}"); fr[(s,n)]=q.issue()
    vq.wait(gl[0]); e("s_barrier")
    for n in range(PD): rd(0,n)
    for s in range(NST):
        sl=s%NS
        if s<NST-1:
            vq.wait(gl[s+1])
            if not EXP&512: e("s_barrier")
        g=G(s+NS-1) if s+NS-1<NST else []
        if s==NST-NS+1:
            g=[lambda t=t: (e(f"buffer_load_dwordx2 v[{200+2*t}:{201+2*t}], v15, s[20:23], 0 offen offset:{32*t}"),vq.issue()) for t in range(5)]
        ab=AC+(0 if s<5 else 40)
        for n in range(10):
            f=n+PD
            if f<10: rd(s,f)
            elif s<NST-1: rd(s+1,f-10)
            q.wait(fr[(s,n)])
            qq,t=n//5,n%5; r=4*((10*s+n)%8)
            for i in range(2):
                a=40+16*sl+8*i+4*qq; c=ab+20*i+4*t
                if not EXP&256: e(f"v_mfma_f32_16x16x32_bf16 v[{c}:{c+3}], a[{r}:{r+3}], a[{a}:{a+3}], "+(f"v[{c}:{c+3}]" if (s not in (0,5) or qq) else "0"))
            if g: g.pop(0)()
        assert not g
    if EXP&1024:
        e("s_waitcnt vmcnt(0)"); e("s_add_u32 s59, s59, 1"); e("s_cmp_eq_u32 s59, 1"); e("s_cbranch_scc0 k2_rep2"); stamp()
        if EXP&2048:
            for r in (24,36,40): e(f"s_sub_u32 s{r}, s{r}, {32<<20}"); e(f"s_subb_u32 s{r+1}, s{r+1}, 0")
        e("s_branch k2_rep"); lab("k2_rep2")
    e("s_nop 15"); stamp(); e("s_barrier")
    e("v_lshlrev_b32 v40, 4, v4"); e("v_mul_u32_u24 v41, 10240, v3"); e("v_add_u32 v41, v41, v40")
    e("v_xor_b32 v42, 2, v3"); e("v_mul_u32_u24 v42, 10240, v42"); e("v_add_u32 v42, v42, v40")
    e("s_cmp_eq_u32 s53, 0"); e("s_cbranch_scc1 k2_kp0")
    for p in range(2):
        for t in range(5): e(f"ds_write_b128 v41, v[{AC+40*p+4*t}:{AC+40*p+4*t+3}] offset:{1024*(5*p+t)}")
    for p in range(2):
        for t in range(5):
            for r in range(4): e(f"v_mov_b32 v{44+20*p+4*t+r}, v{AC+40*p+20+4*t+r}")
    e("s_branch k2_j")
    lab("k2_kp0")
    for p in range(2):
        for t in range(5): e(f"ds_write_b128 v41, v[{AC+40*p+20+4*t}:{AC+40*p+20+4*t+3}] offset:{1024*(5*p+t)}")
    for p in range(2):
        for t in range(5):
            for r in range(4): e(f"v_mov_b32 v{44+20*p+4*t+r}, v{AC+40*p+4*t+r}")
    lab("k2_j")
    e("s_waitcnt lgkmcnt(0)"); e("s_barrier")
    for n in range(10): e(f"ds_read_b128 v[{140+4*n}:{143+4*n}], v42 offset:{1024*n}")
    e("s_waitcnt vmcnt(0) lgkmcnt(0)")
    for n in range(0,40,2): e(f"v_pk_add_f32 v[{44+n}:{45+n}], v[{44+n}:{45+n}], v[{140+n}:{141+n}]")
    for t in range(5):
        A=44+4*t; B=64+4*t
        rnd2(A,A+1,24); rnd2(A+2,A+3,25); rnd2(B,B+1,26); rnd2(B+2,B+3,27)
        for r in range(4):
            xr=200+2*t+(r>>1)
            e(f"v_lshlrev_b32 v{28+r}, 16, v{xr}" if r%2==0 else f"v_and_b32 v{28+r}, 0xffff0000, v{xr}")
        for r in (0,2): e(f"v_pk_add_f32 v[{A+r}:{A+r+1}], v[{A+r}:{A+r+1}], v[{28+r}:{29+r}]")
        rnd2(A,A+1,24); rnd2(A+2,A+3,25)
        for r in (0,2): e(f"v_pk_add_f32 v[{A+r}:{A+r+1}], v[{A+r}:{A+r+1}], v[{B+r}:{B+r+1}]")
        e(f"v_cvt_pk_bf16_f32 v{180+2*t}, v{A}, v{A+1}"); e(f"v_cvt_pk_bf16_f32 v{181+2*t}, v{A+2}, v{A+3}")
        e(f"buffer_store_dwordx2 v[{180+2*t}:{181+2*t}], v15, s[32:35], 0 offen offset:{32*t}")
    stamp(); stamp_out("k2",16)
    lab("k2_end"); e("s_endpgm")

N="parallel_sum__sliding_local_dilated__glu_gated_swiglu__prompt"
hdr=open(f"cdna_kernels/{N}.s.ref").read().split("; Override")[0]
k0(); k1(); k2()
out=hdr+f"; @launch kernel=k0_kernel grid=({K0G},1,1) block=(256,1,1) lds=24576\n; @launch kernel=k1_kernel grid=(256,1,1) block=(256,1,1) lds={NS*SB}\n; @launch kernel=k2_kernel grid=(256,1,1) block=(256,1,1) lds={NS*SB}\n"
out+='.amdgcn_target "amdgcn-amd-amdhsa--gfx950"\n.text\n.globl k0_kernel\n.globl k1_kernel\n.globl k2_kernel\n.p2align 8\n'
out+="\n".join(L)+"\n.section .rodata,\"a\"\n"
for k,nv,ao in (("k0_kernel",56,56),("k1_kernel",256+112,256),("k2_kernel",256+136,256)):
    out+=f""".p2align 6
.amdhsa_kernel {k}
  .amdhsa_next_free_vgpr {nv}
  .amdhsa_next_free_sgpr 102
  .amdhsa_accum_offset {ao}
  .amdhsa_group_segment_fixed_size 0
  .amdhsa_kernarg_size 80
  .amdhsa_user_sgpr_count 2
  .amdhsa_user_sgpr_kernarg_segment_ptr 1
  .amdhsa_system_sgpr_workgroup_id_x 1
.end_amdhsa_kernel
"""
open(os.environ.get("OUT",f"cdna_kernels/{N}.s"),"w").write(out)
```

```python
import os
L=[]
def e(s): L.append("    "+s)
def lab(s): L.append(s+":")
WS_O=0; WS_H=4<<20; WS_XN=16<<20; WS_W1=20<<20; WS_W2=28<<20
EXP=int(os.environ.get('EXP','0')); STAMP=int(os.environ.get('STAMP','0')); _st=[0]
SV=[80]
def stamp():
    if not STAMP: return
    i=_st[0]; _st[0]+=1
    e("s_memtime s[100:101]"); e("s_waitcnt lgkmcnt(0)"); e(f"v_mov_b32 v{SV[0]+i}, s100")
def stamp_out(n,wsg):
    if not STAMP: return
    k=_st[0]; _st[0]=0
    e("s_waitcnt lgkmcnt(0)"); e("s_cmp_lg_u32 s2, 0"); e(f"s_cbranch_scc1 {n}_nost")
    e("s_load_dwordx2 s[88:89], s[0:1], 64"); e("s_waitcnt lgkmcnt(0)"); e("s_mov_b32 s90, 256"); e("s_mov_b32 s91, 0x00020000")
    e(f"s_lshl_b32 s94, s{wsg}, 6"); e("v_mov_b32 v1, 0")
    for i in range(k):
        e(f"v_sub_u32 v2, v{SV[0]+i}, v{SV[0]}"); e(f"buffer_store_dword v2, v1, s[88:91], s94 offen offset:{4*i}")
    lab(f"{n}_nost")
def srd(d, lo, nbytes, off=0):
    if off:
        e(f"s_add_u32 s{d}, s{lo}, {off}"); e(f"s_addc_u32 s{d+1}, s{lo+1}, 0")
    else:
        e(f"s_mov_b32 s{d}, s{lo}"); e(f"s_mov_b32 s{d+1}, s{lo+1}")
    e(f"s_mov_b32 s{d+2}, {nbytes}"); e(f"s_mov_b32 s{d+3}, 0x00020000")
def rnd(v, t):
    e(f"v_cvt_pk_bf16_f32 v{t}, v{v}, v{v}"); e(f"v_lshlrev_b32 v{v}, 16, v{t}")
def rnd2(a,b,t):
    e(f"v_cvt_pk_bf16_f32 v{t}, v{a}, v{b}"); e(f"v_lshlrev_b32 v{a}, 16, v{t}"); e(f"v_and_b32 v{b}, 0xffff0000, v{t}")
NS=6; SB=20480; PD=6; PF=int(os.environ.get('PF','0')); PFA=int(os.environ.get('PFA','1')); ROT1=int(os.environ.get('ROT1','5'))

def magic(d): return (1<<32)//d+1
def divc(q,r,x,d,t):
    e(f"s_mov_b32 s30, {magic(d)}"); e(f"v_mul_hi_u32 v{q}, v{x}, s30"); e(f"v_mul_u32_u24 v{t}, {d}, v{q}"); e(f"v_sub_u32 v{r}, v{x}, v{t}")
JOBS=[(8,1920,80,0),(32,1536,80,1),(40,1536,80,2),(16,640,80,3),(48,640,192,4)]
def k0():
    lab("k0_kernel")
    e("s_cmp_ge_u32 s2, 128"); e("s_cbranch_scc1 k0_rep2")
    e("s_load_dwordx2 s[4:5], s[0:1], 0"); e("s_load_dwordx2 s[12:13], s[0:1], 72")
    e("v_lshrrev_b32 v3, 4, v0"); e("v_and_b32 v1, 15, v0"); e("s_lshl_b32 s14, s2, 4"); e("v_add_u32 v4, s14, v3")
    e("v_mul_u32_u24 v4, 1280, v4"); e("v_lshl_add_u32 v4, v1, 4, v4")
    e("s_mul_i32 s15, s2, 20480"); e("v_lshrrev_b32 v6, 2, v1"); e("v_lshlrev_b32 v5, 10, v6"); e("v_lshl_add_u32 v5, v3, 4, v5"); e("v_add_u32 v5, s15, v5")
    e("v_and_b32 v6, 1, v1"); e("v_lshlrev_b32 v6, 1, v6"); e("v_bfe_u32 v7, v1, 1, 1"); e("v_add_u32 v6, v6, v7"); e("v_lshl_add_u32 v5, v6, 8, v5")
    e("v_cmp_eq_u32 s[18:19], 1, v7")
    e("s_waitcnt lgkmcnt(0)")
    srd(20,4,2048*1280); srd(24,12,2048*1280,WS_XN)
    for i in range(5): e(f"buffer_load_dwordx4 v[{32+4*i}:{35+4*i}], v4, s[20:23], 0 offen offset:{256*i}")
    e("v_mov_b32 v20, 0"); e("v_mov_b32 v21, 0"); e("v_mov_b32 v22, 0x3f803f80")
    e("s_waitcnt vmcnt(0)")
    for i in range(20): e(f"v_dot2c_f32_bf16 v20, v{32+i}, v22"); e(f"v_dot2c_f32_bf16 v21, v{32+i}, v{32+i}")
    for m in (8,4,2,1):
        e("s_nop 1"); e(f"v_add_f32_dpp v20, v20, v20 row_ror:{m} row_mask:0xf bank_mask:0xf"); e(f"v_add_f32_dpp v21, v21, v21 row_ror:{m} row_mask:0xf bank_mask:0xf")
    e("v_mul_f32 v20, 0x3acccccd, v20"); e("v_mul_f32 v21, 0x3acccccd, v21")
    e("v_fma_f32 v21, -v20, v20, v21"); e("v_max_f32 v21, 0, v21"); rnd(20,23); rnd(21,23)
    e("v_add_f32 v21, 0x3727c5ac, v21"); rnd(21,23); e("v_sqrt_f32 v21, v21"); e("s_nop 0"); rnd(21,23); e("v_rcp_f32 v21, v21"); e("s_nop 0")
    for i in range(5):
        for d in range(4):
            r=32+4*i+d
            e(f"v_lshlrev_b32 v24, 16, v{r}"); e(f"v_and_b32 v25, 0xffff0000, v{r}")
            e("v_sub_f32 v24, v24, v20"); e("v_sub_f32 v25, v25, v20"); rnd2(24,25,26)
            e("v_mul_f32 v24, v24, v21"); e("v_mul_f32 v25, v25, v21"); e(f"v_cvt_pk_bf16_f32 v{r}, v24, v25")
        r=32+4*i
        e("s_nop 1")
        for d in range(4): e(f"v_mov_b32_dpp v{24+d}, v{r+d} quad_perm:[2,3,0,1] row_mask:0xf bank_mask:0xf")
        e(f"v_cndmask_b32 v28, v{r}, v26, s[18:19]"); e(f"v_cndmask_b32 v29, v{r+1}, v27, s[18:19]")
        e(f"v_cndmask_b32 v30, v24, v{r+2}, s[18:19]"); e(f"v_cndmask_b32 v31, v25, v{r+3}, s[18:19]")
        e(f"s_mov_b32 s31, {4096*i}"); e(f"buffer_store_dwordx4 v[28:31], v5, s[24:27], s31 offen")
        e("s_nop 1")
    e("s_endpgm")
    lab("k0_rep2")
    e("s_cmp_ge_u32 s2, 264"); e("s_cbranch_scc1 k0_fin")
    e("s_load_dwordx2 s[6:7], s[0:1], 16"); e("s_load_dwordx2 s[8:9], s[0:1], 48"); e("s_load_dwordx2 s[12:13], s[0:1], 72")
    e("s_sub_u32 s14, s2, 128"); e("s_mul_hi_u32 s15, s14, 252645136"); e("s_mul_i32 s17, s15, 17"); e("s_sub_u32 s17, s14, s17")
    e("v_and_b32 v1, 15, v0"); e("v_bfe_u32 v2, v0, 4, 2"); e("v_lshrrev_b32 v3, 6, v0"); e("v_and_b32 v4, 63, v0")
    e("s_waitcnt lgkmcnt(0)")
    srd(24,6,640*1280); srd(28,8,1536*1280); srd(36,12,8*68*5120,WS_W2)
    e("s_sub_u32 s18, s17, 5"); e("s_cmp_lt_u32 s17, 5")
    for i in range(4): e(f"s_cselect_b32 s{44+i}, s{24+i}, s{28+i}")
    e("s_cselect_b32 s18, s17, s18"); e("s_mul_i32 s48, s18, 163840")
    e("s_mul_i32 s19, s15, 160")
    for j in range(5):
        e(f"v_add_u32 v8, {256*j}, v0"); e("v_mul_u32_u24 v9, 0x199a, v8"); e("v_lshrrev_b32 v9, 16, v9"); e("v_mul_u32_u24 v10, 10, v9"); e("v_sub_u32 v10, v8, v10")
        e("v_mul_u32_u24 v11, 1280, v9"); e("v_lshl_add_u32 v11, v10, 4, v11"); e("v_add_u32 v11, s19, v11")
        e(f"buffer_load_dwordx4 v[{32+4*j}:{35+4*j}], v11, s[44:47], s48 offen")
        e("v_mul_u32_u24 v11, 176, v9"); e(f"v_lshl_add_u32 v{15+j}, v10, 4, v11")
    e("v_lshrrev_b32 v20, 2, v1"); e("v_lshl_add_u32 v20, v2, 3, v20"); e("v_lshl_add_u32 v20, v3, 5, v20"); e("v_mul_u32_u24 v20, 176, v20"); e("v_and_b32 v22, 3, v1"); e("v_lshl_add_u32 v20, v22, 3, v20")
    e("s_mul_i32 s18, s14, 20480"); e("v_lshlrev_b32 v21, 4, v4"); e("v_mul_u32_u24 v22, 5120, v3"); e("v_add_u32 v21, v21, v22"); e("v_add_u32 v21, s18, v21")
    e("s_waitcnt vmcnt(0)")
    for j in range(5): e(f"ds_write_b128 v{15+j}, v[{32+4*j}:{35+4*j}]")
    e("s_waitcnt lgkmcnt(0)"); e("s_barrier")
    for j in range(5):
        e(f"ds_read_b64_tr_b16 v[{32+4*j}:{33+4*j}], v20 offset:{32*j}"); e(f"ds_read_b64_tr_b16 v[{34+4*j}:{35+4*j}], v20 offset:{32*j+4*176}")
    e("s_waitcnt lgkmcnt(0)")
    for j in range(5): e(f"s_mov_b32 s31, {1024*j}"); e(f"buffer_store_dwordx4 v[{32+4*j}:{35+4*j}], v21, s[36:39], s31 offen")
    lab("k0_fin")
    e("s_endpgm")
    global K0G; K0G=264

class LQ:
    def __init__(s): s.n=0; s.done=0
    def issue(s): s.n+=1; return s.n
    def wait(s,i):
        if i>s.done:
            e(f"s_waitcnt lgkmcnt({min(15,s.n-i)})"); s.done=i
class VQ:
    def __init__(s): s.n=0; s.done=0
    def issue(s): s.n+=1; return s.n
    def wait(s,i):
        if i>s.done:
            e(f"s_waitcnt vmcnt({min(63,s.n-i)})"); s.done=i
def k1():
    AS=528; AC=88; HA=248; SB1=24576; PD1=int(os.environ.get('PD1','5'))
    L.append(".p2align 8"); lab("k1_kernel")
    e("s_cmp_ge_u32 s2, 256"); e("s_cbranch_scc1 k1_end")
    e("s_load_dwordx2 s[12:13], s[0:1], 72"); e("s_load_dwordx2 s[6:7], s[0:1], 8"); e("s_load_dwordx4 s[8:11], s[0:1], 32")
    stamp(); e("s_lshr_b32 s14, s2, 4"); e("s_and_b32 s15, s2, 15")
    e("v_and_b32 v1, 15, v0"); e("v_bfe_u32 v2, v0, 4, 2"); e("v_lshrrev_b32 v3, 6, v0"); e("v_and_b32 v4, 63, v0")
    e("s_nop 1"); e("v_readfirstlane_b32 s16, v3")
    e("v_lshlrev_b32 v24, 4, v4")
    e("s_lshl_b32 s17, s14, 3"); e("s_sub_u32 s18, s17, 1"); e("s_mul_i32 s18, s18, 20480"); e("v_add_u32 v9, s18, v24")
    e("s_lshl_b32 s18, s16, 1"); e("s_add_u32 s17, s17, s18"); e("s_mul_i32 s17, s17, 20480"); e("v_add_u32 v5, s17, v24"); e("v_add_u32 v6, 20480, v5")
    e("s_waitcnt lgkmcnt(0)")
    srd(20,12,2048*1280,WS_XN); srd(36,12,2048*1280,WS_O); srd(40,12,2048*3072,WS_H)
    vq=VQ(); gl={}
    def GA(s):
        sl=s%NS
        def al(i):
            if i==0: e(f"s_mov_b32 s49, {s*1024}")
            a=40+12*sl+4*i
            e(f"buffer_load_dwordx4 a[{a}:{a+3}], v{(5,6,9)[i]}, s[20:23], s49 offen"); gl[s]=vq.issue()
        return [lambda i=i:al(i) for i in range(3)]
    for s in range(NS-1):
        for f in GA(s): f()
    e("s_mul_i32 s52, s15, 80"); e("s_mul_i32 s53, s15, 192")
    for j in range(6):
        e(f"s_mul_i32 s30, s16, 6"); e(f"s_add_u32 s30, s30, {j}")
        S=64+4*j
        e(f"s_mov_b32 s{S}, s6"); e(f"s_mov_b32 s{S+1}, s7"); e(f"s_mov_b32 s{S+2}, {640*3840}"); e(f"s_mov_b32 s{S+3}, 0x00020000")
        e("s_mov_b32 s31, s30"); e(f"s_mov_b32 s{94+j}, 3840"); e("s_mov_b32 s32, 18"); e(f"s_mov_b32 s33, {magic(18)}"); e("s_mov_b32 s34, 15")
        e("s_add_u32 s54, s52, 1280"); e("s_add_u32 s55, s52, 2480"); e("s_sub_u32 s56, s52, 160"); e(f"s_lshl_b32 s{88+j}, s30, 10")
        e("s_cmp_lt_u32 s30, 9"); e(f"s_cbranch_scc1 k1_sl{j}")
        e(f"s_mov_b32 s{S}, s8"); e(f"s_mov_b32 s{S+1}, s9"); e(f"s_mov_b32 s{S+2}, {640*3072}")
        e("s_sub_u32 s31, s30, 9"); e(f"s_mov_b32 s{94+j}, 3072"); e("s_mov_b32 s32, 14"); e(f"s_mov_b32 s33, {magic(14)}"); e("s_mov_b32 s34, 12")
        e("s_mov_b32 s54, s53"); e("s_mov_b32 s55, s53"); e("s_mov_b32 s56, s53")
        e("s_cmp_lt_u32 s30, 16"); e(f"s_cbranch_scc1 k1_sl{j}")
        e(f"s_mov_b32 s{S}, s10"); e(f"s_mov_b32 s{S+1}, s11"); e("s_sub_u32 s31, s30, 16")
        e("s_cmp_lt_u32 s30, 23"); e(f"s_cbranch_scc1 k1_sl{j}"); e("s_mov_b32 s34, 0")
        lab(f"k1_sl{j}")
        e("s_lshl_b32 s31, s31, 6"); e("v_add_u32 v26, s31, v4"); e("v_mul_hi_u32 v27, v26, s33"); e("v_mul_u32_u24 v28, s32, v27"); e("v_sub_u32 v28, v26, v28")
        e("v_mov_b32 v29, s56"); e("v_mov_b32 v30, s55"); e("v_cmp_gt_u32 vcc, 10, v28"); e("s_nop 1"); e("v_cndmask_b32 v29, v29, v30, vcc")
        e("v_mov_b32 v30, s54"); e("v_cmp_gt_u32 vcc, 5, v28"); e("s_nop 1"); e("v_cndmask_b32 v29, v29, v30, vcc")
        e(f"v_mul_u32_u24 v27, s{94+j}, v27"); e("v_lshl_add_u32 v27, v28, 4, v27"); e("v_add_u32 v27, v27, v29")
        e("v_mov_b32 v30, 0x40000000"); e("v_cmp_gt_u32 vcc, s34, v28"); e("s_nop 1"); e(f"v_cndmask_b32 v{12+j}, v30, v27, vcc")
        e(f"s_lshl_b32 s{94+j}, s{94+j}, 5")
    def GW(s):
        sl=s%NS
        def dma(j):
            e(f"s_add_u32 m0, s{88+j}, {sl*SB1}"); e(f"s_mul_i32 s48, s{94+j}, {s}")
            e(f"buffer_load_dwordx4 v{12+j}, s[{64+4*j}:{67+4*j}], s48 offen lds"); gl[s]=vq.issue()
        return [lambda j=j:dma(j) for j in range(6)]
    for s in range(NS-1):
        for f in GW(s): f()
    e("v_lshrrev_b32 v28, 2, v1"); e("v_lshl_add_u32 v28, v2, 2, v28"); e("v_and_b32 v29, 3, v1"); e("v_lshlrev_b32 v29, 3, v29")
    e("v_mul_u32_u24 v18, 288, v28"); e("v_add_u32 v18, v18, v29"); e("v_mul_u32_u24 v21, 224, v28"); e("v_add_u32 v21, v21, v29"); e("v_lshl_add_u32 v25, v3, 5, v18")
    for b in (18,21,25):
        e(f"v_add_u32 v{b+1}, {2*SB1}, v{b}"); e(f"v_add_u32 v{b+2}, {4*SB1}, v{b}")
    stamp()
    q=LQ(); fr={}; hf={}
    def trd(reg,base,off,p):
        e(f"ds_read_b64_tr_b16 a[{reg}:{reg+1}], v{base} offset:{off}"); q.issue(); e(f"ds_read_b64_tr_b16 a[{reg+2}:{reg+3}], v{base} offset:{off+16*p}"); return q.issue()
    def rd(s,t):
        sl=s%NS; r=4*((20*s+t)%8); so=(sl%2)*SB1
        if t<8: fr[(s,t)]=trd(r,18+sl//2,so+32*t,288)
        else: fr[(s,t)]=trd(r,21+sl//2,so+9216+7168*((t-8)//6)+32*((t-8)%6),224)
    def rdh(s,k):
        sl=s%NS; so=(sl%2)*SB1
        hf[(s,k)]=trd(32+4*k,(25,18)[k]+sl//2,so+128*k,288)
    vq.wait(gl[0]); stamp(); e("s_barrier")
    for t in range(PD1): rd(0,t)
    rdh(0,0); rdh(0,1)
    for s in range(20):
        sl=s%NS; ab=40+12*sl
        if s<19:
            vq.wait(gl[s+1]); e("s_barrier")
        if s in (0,10): stamp()
        g=(GW(s+NS-1)+GA(s+NS-1)) if s+NS-1<20 and not (EXP&1) else []
        for t in range(20):
            f=t+PD1
            if f<20: rd(s,f)
            elif s<19: rd(s+1,f-20)
            if s<19 and t in (10,12): rdh(s+1,(t-10)//2)
            q.wait(fr[(s,t)])
            r=4*((20*s+t)%8)
            for i in range(2):
                a=AC+8*t+4*i
                e(f"v_mfma_f32_16x16x32_bf16 v[{a}:{a+3}], a[{r}:{r+3}], a[{ab+4*i}:{ab+4*i+3}], "+(f"v[{a}:{a+3}]" if s else "0"))
            if t==2:
                q.wait(hf[(s,1)])
                for k in range(2):
                    a=HA+4*k
                    e(f"v_mfma_f32_16x16x32_bf16 v[{a}:{a+3}], a[{32+4*k}:{35+4*k}], a[{ab+8}:{ab+11}], "+(f"v[{a}:{a+3}]" if s else "0"))
            if t%2==1 and g: g.pop(0)()
        assert not g
    e("s_nop 15"); stamp(); e("s_barrier")
    def put(a, addr, off):
        rnd2(a,a+1,28); rnd2(a+2,a+3,29)
        e(f"ds_write_b128 v{addr}, v[{a}:{a+3}] offset:{off}")
    e("v_lshl_add_u32 v4, v3, 5, v1"); e("v_add_u32 v4, 16, v4"); e(f"v_mul_u32_u24 v4, {AS}, v4"); e("v_lshl_add_u32 v4, v2, 4, v4")
    for t in range(8):
        for i in range(2): put(AC+8*t+4*i,4,16*AS*i+64*t)
    e(f"v_mul_u32_u24 v5, {AS}, v1"); e("v_lshl_add_u32 v5, v2, 4, v5"); e("v_lshl_add_u32 v6, v3, 6, v5")
    put(HA,6,0)
    e("s_cmp_lg_u32 s16, 0"); e("s_cbranch_scc1 k1_a"); put(HA+4,5,256); lab("k1_a")
    e("s_lshl_b32 s17, s14, 3"); e("s_lshl_b32 s18, s16, 1"); e("s_add_u32 s17, s17, s18"); e("s_mul_i32 s17, s17, 49152"); e("s_mul_i32 s18, s15, 3072"); e("s_add_u32 s17, s17, s18")
    e("v_lshrrev_b32 v7, 1, v2"); e("v_lshlrev_b32 v7, 8, v7"); e("v_lshl_add_u32 v7, v1, 4, v7"); e("v_and_b32 v8, 1, v2"); e("v_lshl_add_u32 v7, v8, 3, v7"); e("v_add_u32 v7, s17, v7"); e("v_add_u32 v8, 49152, v7")
    e("s_mov_b32 s54, 0xbfb8aa3b"); e("s_mov_b32 s55, 0xbfb8aa3b"); e("s_mov_b32 s56, 1.0"); e("s_mov_b32 s57, 1.0"); e("s_mov_b32 s58, 0xffff0000")
    for t in range(6):
        for i in range(2):
            Gt=AC+8*(8+t)+4*i; U=AC+8*(14+t)+4*i; T=32+8*i
            for k,R in enumerate((Gt,Gt+2,U,U+2)): e(f"v_cvt_pk_bf16_f32 v{T+k}, v{R}, v{R+1}")
            for k,R in enumerate((Gt,Gt+2,U,U+2)): e(f"v_lshlrev_b32 v{R}, 16, v{T+k}"); e(f"v_and_b32 v{R+1}, s58, v{T+k}")
            for k in (0,2): e(f"v_pk_mul_f32 v[{T+k}:{T+k+1}], v[{Gt+k}:{Gt+k+1}], s[54:55]")
            for k in range(4): e(f"v_exp_f32 v{T+k}, v{T+k}")
            for k in (0,2): e(f"v_pk_add_f32 v[{T+k}:{T+k+1}], v[{T+k}:{T+k+1}], s[56:57]")
            for k in range(4): e(f"v_rcp_f32 v{T+k}, v{T+k}")
            for k in (0,2): e(f"v_pk_mul_f32 v[{Gt+k}:{Gt+k+1}], v[{Gt+k}:{Gt+k+1}], v[{T+k}:{T+k+1}]")
            for k in (0,2): e(f"v_cvt_pk_bf16_f32 v{T+4+k}, v{Gt+k}, v{Gt+k+1}")
            for k in (0,2): e(f"v_lshlrev_b32 v{Gt+k}, 16, v{T+4+k}"); e(f"v_and_b32 v{Gt+k+1}, s58, v{T+4+k}")
            for k in (0,2): e(f"v_pk_mul_f32 v[{Gt+k}:{Gt+k+1}], v[{Gt+k}:{Gt+k+1}], v[{U+k}:{U+k+1}]")
            e(f"v_cvt_pk_bf16_f32 v{T+6}, v{Gt}, v{Gt+1}"); e(f"v_cvt_pk_bf16_f32 v{T+7}, v{Gt+2}, v{Gt+3}")
            e(f"buffer_store_dwordx2 v[{T+6}:{T+7}], v{7+i}, s[40:43], 0 offen offset:{(t>>1)*1024+(t&1)*512}")
    stamp(); e("s_waitcnt lgkmcnt(0)"); e("s_barrier")
    e("v_and_b32 v4, 127, v0"); e("v_lshrrev_b32 v5, 7, v0")
    e("v_add_u32 v6, 16, v4"); e(f"v_mul_u32_u24 v6, {AS}, v6"); e("v_mul_u32_u24 v7, 80, v5"); e("v_add_u32 v6, v6, v7")
    e(f"v_add_u32 v9, {-14*AS}, v6")
    e("s_lshl_b32 s17, s14, 7"); e("v_add_u32 v8, s17, v4")
    q=LQ(); kr={}; vr={}
    for c in range(5): e(f"ds_read_b128 v[{44+4*c}:{47+4*c}], v6 offset:{320+16*c}"); q.issue()
    def rk(w,o,d):
        for c in range(5): e(f"ds_read_b128 v[{96+20*w+4*c}:{99+20*w+4*c}], v9 offset:{(14-2*w)*AS+o+16*c}"); d[w]=q.issue()
    rk(0,0,kr); rk(1,0,kr)
    for w in range(8):
        q.wait(kr[w]); K=96+20*w
        e(f"v_pk_mul_f32 v[40:41], v[44:45], v[{K}:{K+1}]"); e(f"v_pk_mul_f32 v[42:43], v[46:47], v[{K+2}:{K+3}]")
        for d in range(4,20,2): e(f"v_pk_fma_f32 v[{40+(d&2)}:{41+(d&2)}], v[{44+d}:{45+d}], v[{K+d}:{K+d+1}], v[{40+(d&2)}:{41+(d&2)}]")
        if w+2<8: rk(w+2,0,kr)
        rk(w,160,vr)
        e("v_pk_add_f32 v[40:41], v[40:41], v[42:43]"); e(f"v_add_f32 v{32+w}, v40, v41")
        rnd(32+w,40); e(f"v_mul_f32 v{32+w}, 0x3e64f92e, v{32+w}"); rnd(32+w,40)
        e(f"v_cmp_le_u32 vcc, {2*w}, v8"); e("v_mov_b32 v41, 0xce6e6b28"); e("s_nop 0"); e(f"v_cndmask_b32 v{32+w}, v41, v{32+w}, vcc")
    e("v_max3_f32 v40, v32, v33, v34"); e("v_max3_f32 v40, v40, v35, v36"); e("v_max3_f32 v40, v40, v37, v38"); e("v_max_f32 v40, v40, v39")
    e("v_mov_b32 v41, 0")
    for w in range(8): e(f"v_sub_f32 v{32+w}, v{32+w}, v40"); e(f"v_mul_f32 v{32+w}, 0x3fb8aa3b, v{32+w}")
    for w in range(8): e(f"v_exp_f32 v{32+w}, v{32+w}")
    e("s_nop 0")
    for w in range(8): e(f"v_add_f32 v41, v41, v{32+w}")
    e("v_rcp_f32 v41, v41"); e("s_nop 0")
    for w in range(8): e(f"v_mul_f32 v{32+w}, v{32+w}, v41")
    for w in range(0,8,2): rnd2(32+w,33+w,40)
    for w in range(8):
        q.wait(vr[w]); V=96+20*w; P=32+(w&~1); osl="op_sel:[0,0,0] op_sel_hi:[0,1,1]" if w%2==0 else "op_sel:[1,0,0] op_sel_hi:[1,1,1]"
        for d in range(0,20,2):
            if w==0: e(f"v_pk_mul_f32 v[{44+d}:{45+d}], v[{P}:{P+1}], v[{V+d}:{V+d+1}] op_sel:[0,0] op_sel_hi:[0,1]")
            else: e(f"v_pk_fma_f32 v[{44+d}:{45+d}], v[{P}:{P+1}], v[{V+d}:{V+d+1}], v[{44+d}:{45+d}] {osl}")
    for d in range(10): e(f"v_cvt_pk_bf16_f32 v{64+d}, v{44+2*d}, v{45+2*d}")
    e("v_lshrrev_b32 v9, 4, v8"); e("v_mul_u32_u24 v9, 20480, v9"); e("v_and_b32 v7, 15, v8"); e("v_lshl_add_u32 v9, v7, 4, v9")
    e("v_mul_u32_u24 v7, 20, v5"); e("s_mul_i32 s18, s15, 40"); e("v_add_u32 v7, s18, v7")
    for c in range(5):
        e(f"v_add_u32 v10, {4*c}, v7"); e("v_lshrrev_b32 v11, 5, v10"); e("v_lshl_add_u32 v12, v11, 10, v9"); e("v_bfe_u32 v11, v10, 3, 2"); e("v_lshl_add_u32 v12, v11, 8, v12"); e("v_bfe_u32 v11, v10, 2, 1"); e("v_lshl_add_u32 v12, v11, 3, v12")
        e(f"buffer_store_dwordx2 v[{64+2*c}:{65+2*c}], v12, s[36:39], 0 offen")
    stamp(); stamp_out("k1",16)
    lab("k1_end"); e("s_endpgm")

def k2():
    NST=17; AC=96; SV[0]=212
    L.append(".p2align 8"); lab("k2_kernel")
    e("s_cmp_ge_u32 s2, 256"); e("s_cbranch_scc1 k2_end")
    e("s_load_dwordx2 s[4:5], s[0:1], 0"); e("s_load_dwordx2 s[10:11], s[0:1], 56"); e("s_load_dwordx2 s[12:13], s[0:1], 72")
    stamp(); e("s_and_b32 s14, s2, 7"); e("s_lshl_b32 s14, s14, 2"); e("s_bfe_u32 s15, s2, 0x20003"); e("s_add_u32 s14, s14, s15"); e("s_lshr_b32 s15, s2, 5")
    if EXP&4: e("s_mov_b32 s14, 0"); e("s_mov_b32 s15, 0")
    if EXP&128: e("s_cmp_ge_u32 s2, 8"); e("s_cbranch_scc1 k2_end")
    e("v_and_b32 v1, 15, v0"); e("v_bfe_u32 v2, v0, 4, 2"); e("v_lshrrev_b32 v3, 6, v0"); e("v_and_b32 v4, 63, v0")
    e("s_nop 1"); e("v_readfirstlane_b32 s16, v3"); e("s_nop 3")
    e("s_and_b32 s52, s16, 1"); e("s_lshr_b32 s53, s16, 1"); e("s_lshl_b32 s51, s16, 10")
    e("s_waitcnt lgkmcnt(0)")
    srd(20,4,2048*1280); srd(24,12,8*68*5120,WS_W2); srd(32,10,2048*1280); srd(36,12,2048*1280,WS_O); srd(40,12,2048*3072,WS_H)
    e("v_lshlrev_b32 v24, 4, v4"); e("v_add_u32 v10, s51, v24")
    e("s_lshl_b32 s17, s14, 2"); e("s_lshl_b32 s18, s52, 1"); e("s_add_u32 s17, s17, s18")
    e("s_lshl_b32 s18, s53, 11")
    e("s_mul_i32 s19, s17, 20480"); e("s_add_u32 s19, s19, s18"); e("v_add_u32 v6, s19, v24"); e("v_add_u32 v7, 20480, v6")
    e("s_mul_i32 s19, s17, 49152"); e("s_add_u32 s19, s19, s18"); e("v_add_u32 v8, s19, v24"); e("v_add_u32 v9, 49152, v8")
    e("s_mul_i32 s54, s15, 348160")
    e("s_add_u32 s17, s17, s53"); e("s_lshl_b32 s17, s17, 4"); e("v_add_u32 v15, s17, v1"); e("v_mul_u32_u24 v15, 1280, v15"); e("v_lshl_add_u32 v15, v2, 3, v15"); e("s_mul_i32 s19, s15, 160"); e("v_add_u32 v15, s19, v15")
    vq=VQ(); gl={}
    def G(s):
        sl=s%NS; ko=(s if s<5 else s-5)*4096
        def dma(j):
            e(f"s_add_u32 m0, s51, {sl*SB+j*4096}"); e(f"s_add_u32 s48, s54, {s*SB+j*4096}")
            e(f"buffer_load_dwordx4 v10, s[24:27], s48 offen lds"); gl[s]=vq.issue()
        def al(n):
            i,qq=n>>1,n&1
            if n==0: e(f"s_mov_b32 s49, {ko}")
            a=40+16*sl+8*i+4*qq
            e(f"buffer_load_dwordx4 a[{a}:{a+3}], v{(6 if s<5 else 8)+i}, s[{36 if s<5 else 40}:{39 if s<5 else 43}], s49 offen offset:{1024*qq}"); gl[s]=vq.issue()
        return [lambda j=j:dma(j) for j in range(5)]+[lambda n=n:al(n) for n in range(4)]
    if EXP&2048:
        for r in (24,36,40): e(f"s_add_u32 s{r}, s{r}, {32<<20}"); e(f"s_addc_u32 s{r+1}, s{r+1}, 0")
    if EXP&1024: e("s_mov_b32 s59, 0"); lab("k2_rep")
    for s in range(NS-1):
        for f in G(s): f()
        if s==PFA and PF:
            e("v_lshlrev_b32 v26, 7, v4"); e("s_lshl_b32 s18, s16, 13"); e("s_add_u32 s18, s18, s54")
            e("s_lshl_b32 s19, s14, 2"); e("s_add_u32 s19, s19, s16"); e("s_mul_i32 s19, s19, 49152")
            for i in range(8):
                if 4*i+3<30 or True:
                    e(f"s_add_u32 s48, s18, {5*SB+32768*i}"); e("buffer_load_dword v27, v26, s[24:27], s48 offen"); vq.issue()
                if i<6:
                    e(f"s_add_u32 s48, s19, {8192*i}"); e("buffer_load_dword v27, v26, s[40:43], s48 offen"); vq.issue()
    e("s_mul_i32 s18, s53, 10240"); e("v_add_u32 v24, s18, v24"); e("v_add_u32 v25, 61440, v24")
    q=LQ(); fr={}
    def rd(s,n):
        sl=s%NS; r=4*((10*s+n)%8)
        if EXP&256: fr[(s,n)]=0; return
        e(f"ds_read_b128 a[{r}:{r+3}], v{24+sl//3} offset:{(sl%3)*SB+1024*n}"); fr[(s,n)]=q.issue()
    vq.wait(gl[0]); e("s_barrier")
    for n in range(PD): rd(0,n)
    for s in range(NST):
        sl=s%NS
        if s<NST-1:
            vq.wait(gl[s+1])
            if not EXP&512: e("s_barrier")
        g=G(s+NS-1) if s+NS-1<NST else []
        if s==NST-NS+1:
            g=[lambda t=t: (e(f"buffer_load_dwordx2 v[{200+2*t}:{201+2*t}], v15, s[20:23], 0 offen offset:{32*t}"),vq.issue()) for t in range(5)]
        ab=AC+(0 if s<5 else 40)
        for n in range(10):
            f=n+PD
            if f<10: rd(s,f)
            elif s<NST-1: rd(s+1,f-10)
            q.wait(fr[(s,n)])
            qq,t=n//5,n%5; r=4*((10*s+n)%8)
            for i in range(2):
                a=40+16*sl+8*i+4*qq; c=ab+20*i+4*t
                if not EXP&256: e(f"v_mfma_f32_16x16x32_bf16 v[{c}:{c+3}], a[{r}:{r+3}], a[{a}:{a+3}], "+(f"v[{c}:{c+3}]" if (s not in (0,5) or qq) else "0"))
            if g: g.pop(0)()
        assert not g
    if EXP&1024:
        e("s_waitcnt vmcnt(0)"); e("s_add_u32 s59, s59, 1"); e("s_cmp_eq_u32 s59, 1"); e("s_cbranch_scc0 k2_rep2"); stamp()
        if EXP&2048:
            for r in (24,36,40): e(f"s_sub_u32 s{r}, s{r}, {32<<20}"); e(f"s_subb_u32 s{r+1}, s{r+1}, 0")
        e("s_branch k2_rep"); lab("k2_rep2")
    e("s_nop 15"); stamp(); e("s_barrier")
    e("v_lshlrev_b32 v40, 4, v4"); e("v_mul_u32_u24 v41, 10240, v3"); e("v_add_u32 v41, v41, v40")
    e("v_xor_b32 v42, 2, v3"); e("v_mul_u32_u24 v42, 10240, v42"); e("v_add_u32 v42, v42, v40")
    e("s_cmp_eq_u32 s53, 0"); e("s_cbranch_scc1 k2_kp0")
    for p in range(2):
        for t in range(5): e(f"ds_write_b128 v41, v[{AC+40*p+4*t}:{AC+40*p+4*t+3}] offset:{1024*(5*p+t)}")
    for p in range(2):
        for t in range(5):
            for r in range(4): e(f"v_mov_b32 v{44+20*p+4*t+r}, v{AC+40*p+20+4*t+r}")
    e("s_branch k2_j")
    lab("k2_kp0")
    for p in range(2):
        for t in range(5): e(f"ds_write_b128 v41, v[{AC+40*p+20+4*t}:{AC+40*p+20+4*t+3}] offset:{1024*(5*p+t)}")
    for p in range(2):
        for t in range(5):
            for r in range(4): e(f"v_mov_b32 v{44+20*p+4*t+r}, v{AC+40*p+4*t+r}")
    lab("k2_j")
    e("s_waitcnt lgkmcnt(0)"); e("s_barrier")
    for n in range(10): e(f"ds_read_b128 v[{140+4*n}:{143+4*n}], v42 offset:{1024*n}")
    e("s_waitcnt vmcnt(0) lgkmcnt(0)")
    for n in range(0,40,2): e(f"v_pk_add_f32 v[{44+n}:{45+n}], v[{44+n}:{45+n}], v[{140+n}:{141+n}]")
    for t in range(5):
        A=44+4*t; B=64+4*t
        rnd2(A,A+1,24); rnd2(A+2,A+3,25); rnd2(B,B+1,26); rnd2(B+2,B+3,27)
        for r in range(4):
            xr=200+2*t+(r>>1)
            e(f"v_lshlrev_b32 v{28+r}, 16, v{xr}" if r%2==0 else f"v_and_b32 v{28+r}, 0xffff0000, v{xr}")
        for r in (0,2): e(f"v_pk_add_f32 v[{A+r}:{A+r+1}], v[{A+r}:{A+r+1}], v[{28+r}:{29+r}]")
        rnd2(A,A+1,24); rnd2(A+2,A+3,25)
        for r in (0,2): e(f"v_pk_add_f32 v[{A+r}:{A+r+1}], v[{A+r}:{A+r+1}], v[{B+r}:{B+r+1}]")
        e(f"v_cvt_pk_bf16_f32 v{180+2*t}, v{A}, v{A+1}"); e(f"v_cvt_pk_bf16_f32 v{181+2*t}, v{A+2}, v{A+3}")
        e(f"buffer_store_dwordx2 v[{180+2*t}:{181+2*t}], v15, s[32:35], 0 offen offset:{32*t}")
    stamp(); stamp_out("k2",16)
    lab("k2_end"); e("s_endpgm")

N="parallel_sum__sliding_local_dilated__glu_gated_swiglu__prompt"
hdr=open(f"cdna_kernels/{N}.s.ref").read().split("; Override")[0]
k0(); k1(); k2()
out=hdr+f"; @launch kernel=k0_kernel grid=({K0G},1,1) block=(256,1,1) lds=24576\n; @launch kernel=k1_kernel grid=(256,1,1) block=(256,1,1) lds={NS*24576}\n; @launch kernel=k2_kernel grid=(256,1,1) block=(256,1,1) lds={NS*SB}\n"
out+='.amdgcn_target "amdgcn-amd-amdhsa--gfx950"\n.text\n.globl k0_kernel\n.globl k1_kernel\n.globl k2_kernel\n.p2align 8\n'
out+="\n".join(L)+"\n.section .rodata,\"a\"\n"
for k,nv,ao in (("k0_kernel",56,56),("k1_kernel",256+112,256),("k2_kernel",256+136,256)):
    out+=f""".p2align 6
.amdhsa_kernel {k}
  .amdhsa_next_free_vgpr {nv}
  .amdhsa_next_free_sgpr 102
  .amdhsa_accum_offset {ao}
  .amdhsa_group_segment_fixed_size 0
  .amdhsa_kernarg_size 80
  .amdhsa_user_sgpr_count 2
  .amdhsa_user_sgpr_kernarg_segment_ptr 1
  .amdhsa_system_sgpr_workgroup_id_x 1
.end_amdhsa_kernel
"""
open(os.environ.get("OUT",f"cdna_kernels/{N}.s"),"w").write(out)
```

```python
import os
L=[]
def e(s): L.append("    "+s)
def lab(s): L.append(s+":")
WS_O=0; WS_H=4<<20; WS_XN=16<<20; WS_W1=20<<20; WS_W2=28<<20
STF=os.environ.get('STF',''); MAP1=int(os.environ.get('MAP1','0')); EXP=int(os.environ.get('EXP','0')); STAMP=int(os.environ.get('STAMP','0')); _st=[0]
SV=[80]
def stamp():
    if not STAMP: return
    i=_st[0]; _st[0]+=1
    e("s_memtime s[100:101]" if not STAMP&2 else "s_memrealtime s[100:101]"); e("s_waitcnt lgkmcnt(0)"); e(f"v_mov_b32 v{SV[0]+i}, s100")
def stamp_out(n,wsg,wg=0):
    if not STAMP: return
    k=_st[0]; _st[0]=0
    e("s_waitcnt lgkmcnt(0)"); e(f"s_cmp_lg_u32 s2, {wg}"); e(f"s_cbranch_scc1 {n}_nost")
    e("s_load_dwordx2 s[88:89], s[0:1], 64"); e("s_waitcnt lgkmcnt(0)"); e("s_mov_b32 s90, 256"); e("s_mov_b32 s91, 0x00020000")
    e(f"s_lshl_b32 s94, s{wsg}, 6"); e("v_mov_b32 v1, 0")
    for i in range(k):
        e(f"v_sub_u32 v2, v{SV[0]+i}, v{SV[0]}"); e(f"buffer_store_dword v2, v1, s[88:91], s94 offen offset:{4*i}")
    lab(f"{n}_nost")
def srd(d, lo, nbytes, off=0):
    if off:
        e(f"s_add_u32 s{d}, s{lo}, {off}"); e(f"s_addc_u32 s{d+1}, s{lo+1}, 0")
    else:
        e(f"s_mov_b32 s{d}, s{lo}"); e(f"s_mov_b32 s{d+1}, s{lo+1}")
    e(f"s_mov_b32 s{d+2}, {nbytes}"); e(f"s_mov_b32 s{d+3}, 0x00020000")
def rnd(v, t):
    e(f"v_cvt_pk_bf16_f32 v{t}, v{v}, v{v}"); e(f"v_lshlrev_b32 v{v}, 16, v{t}")
def rnd2(a,b,t):
    e(f"v_cvt_pk_bf16_f32 v{t}, v{a}, v{b}"); e(f"v_lshlrev_b32 v{a}, 16, v{t}"); e(f"v_and_b32 v{b}, 0xffff0000, v{t}")
NS=6; SB=20480; PD=6; PF=int(os.environ.get('PF','0')); PFA=int(os.environ.get('PFA','1')); ROT1=int(os.environ.get('ROT1','5'))

def magic(d): return (1<<32)//d+1
def divc(q,r,x,d,t):
    e(f"s_mov_b32 s30, {magic(d)}"); e(f"v_mul_hi_u32 v{q}, v{x}, s30"); e(f"v_mul_u32_u24 v{t}, {d}, v{q}"); e(f"v_sub_u32 v{r}, v{x}, v{t}")
JOBS=[(8,1920,80,0),(32,1536,80,1),(40,1536,80,2),(16,640,80,3),(48,640,192,4)]
def k0():
    lab("k0_kernel")
    e("s_cmp_ge_u32 s2, 128"); e("s_cbranch_scc1 k0_rep" if not EXP&4096 else "s_cbranch_scc1 k0_fin")
    if EXP&8192: e("s_branch k0_fin")
    e("s_load_dwordx2 s[4:5], s[0:1], 0"); e("s_load_dwordx2 s[12:13], s[0:1], 72")
    e("v_lshrrev_b32 v3, 4, v0"); e("v_and_b32 v1, 15, v0"); e("s_lshl_b32 s14, s2, 4"); e("v_add_u32 v4, s14, v3")
    e("v_mul_u32_u24 v4, 1280, v4"); e("v_lshl_add_u32 v4, v1, 4, v4")
    e("s_mul_i32 s15, s2, 20480"); e("v_lshlrev_b32 v5, 8, v1"); e("v_lshl_add_u32 v5, v3, 4, v5"); e("v_add_u32 v5, s15, v5")
    e("s_waitcnt lgkmcnt(0)")
    srd(20,4,2048*1280); srd(24,12,2048*1280,WS_XN)
    for i in range(5): e(f"buffer_load_dwordx4 v[{32+4*i}:{35+4*i}], v4, s[20:23], 0 offen offset:{256*i}")
    e("v_mov_b32 v20, 0"); e("v_mov_b32 v21, 0"); e("v_mov_b32 v22, 0x3f803f80")
    e("s_waitcnt vmcnt(0)")
    for i in range(20): e(f"v_dot2c_f32_bf16 v20, v{32+i}, v22"); e(f"v_dot2c_f32_bf16 v21, v{32+i}, v{32+i}")
    for m in (8,4,2,1):
        e("s_nop 1"); e(f"v_add_f32_dpp v20, v20, v20 row_ror:{m} row_mask:0xf bank_mask:0xf"); e(f"v_add_f32_dpp v21, v21, v21 row_ror:{m} row_mask:0xf bank_mask:0xf")
    e("v_mul_f32 v20, 0x3acccccd, v20"); e("v_mul_f32 v21, 0x3acccccd, v21")
    e("v_fma_f32 v21, -v20, v20, v21"); e("v_max_f32 v21, 0, v21"); rnd(20,23); rnd(21,23)
    e("v_add_f32 v21, 0x3727c5ac, v21"); rnd(21,23); e("v_sqrt_f32 v21, v21"); e("s_nop 0"); rnd(21,23); e("v_rcp_f32 v21, v21"); e("s_nop 0")
    for i in range(5):
        for d in range(4):
            r=32+4*i+d
            e(f"v_lshlrev_b32 v24, 16, v{r}"); e(f"v_and_b32 v25, 0xffff0000, v{r}")
            e("v_sub_f32 v24, v24, v20"); e("v_sub_f32 v25, v25, v20"); rnd2(24,25,26)
            e("v_mul_f32 v24, v24, v21"); e("v_mul_f32 v25, v25, v21"); e(f"v_cvt_pk_bf16_f32 v{r}, v24, v25")
        e(f"s_mov_b32 s31, {4096*i}"); e(f"buffer_store_dwordx4 v[{32+4*i}:{35+4*i}], v5, s[24:27], s31 offen")
    e("s_endpgm")
    lab("k0_rep")
    e("s_cmp_ge_u32 s2, 448"); e("s_cbranch_scc1 k0_rep2")
    SV[0]=24; stamp()
    e("s_load_dwordx2 s[6:7], s[0:1], 8"); e("s_load_dwordx4 s[8:11], s[0:1], 32"); e("s_load_dwordx2 s[12:13], s[0:1], 72")
    e("s_sub_u32 s14, s2, 128"); e("s_mul_hi_u32 s15, s14, 214748365"); e("s_mul_i32 s17, s15, 20"); e("s_sub_u32 s17, s14, s17")
    e("v_and_b32 v1, 15, v0"); e("v_bfe_u32 v2, v0, 4, 2"); e("v_lshrrev_b32 v3, 6, v0"); e("v_and_b32 v4, 63, v0")
    e("s_nop 1"); e("v_readfirstlane_b32 s16, v3")
    e("s_waitcnt lgkmcnt(0)")
    srd(24,6,640*3840); srd(28,8,640*3072); srd(32,10,640*3072); srd(36,12,16*400*1024,WS_W1)
    e("s_cmp_lt_u32 s16, 2")
    for i in range(4): e(f"s_cselect_b32 s{44+i}, s{28+i}, s{32+i}")
    e("s_mul_i32 s19, s15, 80")
    e("v_and_b32 v6, 15, v0"); e("v_lshrrev_b32 v7, 4, v0")
    e("v_cmp_gt_u32 vcc, 5, v6"); e("v_mov_b32 v8, 2480"); e("v_mov_b32 v9, 1280"); e("s_nop 0"); e("v_cndmask_b32 v8, v8, v9, vcc")
    e("v_cmp_gt_u32 vcc, 10, v6"); e("v_mov_b32 v9, -160"); e("s_nop 1"); e("v_cndmask_b32 v8, v9, v8, vcc")
    e("v_cmp_gt_u32 vcc, 15, v6"); e("v_mov_b32 v9, 0x40000000"); e("s_nop 1"); e("v_cndmask_b32 v8, v9, v8, vcc")
    e("v_lshl_add_u32 v8, v6, 4, v8"); e("v_add_u32 v8, s19, v8")
    e("v_mul_u32_u24 v9, 3840, v7"); e("v_add_u32 v10, v8, v9"); e("v_add_u32 v11, 61440, v10")
    e("v_mul_u32_u24 v15, 656, v7"); e("v_lshl_add_u32 v15, v6, 4, v15"); e("v_add_u32 v16, 10496, v15")
    e("s_mul_i32 s19, s15, 192")
    for (j,expr) in ((2,"v_mov_b32 v6, v0"),(3,None),(4,"v_add_u32 v6, 128, v0")):
        if expr: e(expr)
        else:
            e("v_cmp_gt_u32 vcc, 128, v0"); e("v_add_u32 v6, 256, v0"); e("v_subrev_u32 v7, 128, v0"); e("s_nop 0"); e("v_cndmask_b32 v6, v7, v6, vcc")
        e("v_mul_u32_u24 v7, 0x5556, v6"); e("v_lshrrev_b32 v7, 18, v7"); e("v_mul_u32_u24 v8, 12, v7"); e("v_sub_u32 v8, v6, v8")
        e(f"v_mul_u32_u24 v9, 3072, v7"); e("v_lshl_add_u32 v9, v8, 4, v9"); e(f"v_add_u32 v{10+j}, s19, v9")
        e("v_mul_u32_u24 v9, 656, v7"); e("v_lshl_add_u32 v9, v8, 4, v9")
        if j==2: e("v_add_u32 v17, 256, v9")
        elif j==4: e("v_add_u32 v19, 448, v9")
        else:
            e("v_add_u32 v7, 256, v9"); e("v_add_u32 v9, 448, v9"); e("v_cndmask_b32 v18, v9, v7, vcc")
    srds=[24,24,28,44,32]
    e("s_mul_i32 s48, s17, 122880"); e("s_mul_i32 s49, s17, 98304")
    if EXP&16384:
        e("s_mul_i32 s48, s14, 20480"); e("s_add_u32 s48, s48, 0x2800000"); e("s_mov_b32 s38, 0x4000000"); e("v_lshlrev_b32 v10, 4, v0"); e("s_sub_u32 s36, s36, %d"%WS_W1); e("s_subb_u32 s37, s37, 0")
        for j in range(5): e(f"buffer_load_dwordx4 v[{32+4*j}:{35+4*j}], v10, s[36:39], s48 offen"); e("s_add_u32 s48, s48, 4096")
        e("s_add_u32 s36, s36, %d"%WS_W1); e("s_addc_u32 s37, s37, 0"); e("s_mov_b32 s38, %d"%(16*400*1024))
    else:
        for j in range(5): e(f"buffer_load_dwordx4 v[{32+4*j}:{35+4*j}], v{10+j}, s[{srds[j]}:{srds[j]+3}], s{48 if j<2 else 49} offen")
    e("v_lshrrev_b32 v20, 2, v1"); e("v_lshl_add_u32 v20, v2, 3, v20"); e("v_mul_u32_u24 v20, 656, v20"); e("v_and_b32 v22, 3, v1"); e("v_lshl_add_u32 v20, v22, 3, v20"); e("v_lshl_add_u32 v20, v3, 5, v20")
    e("s_mul_i32 s18, s14, 20480"); e("v_lshlrev_b32 v21, 4, v4"); e("v_lshl_add_u32 v21, v3, 10, v21"); e("v_add_u32 v21, s18, v21")
    stamp(); e("s_waitcnt vmcnt(0)"); stamp()
    for j in range(5): e(f"ds_write_b128 v{15+j}, v[{32+4*j}:{35+4*j}]")
    e("s_waitcnt lgkmcnt(0)"); e("s_barrier"); stamp()
    for j in range(5):
        e(f"ds_read_b64_tr_b16 v[{32+4*j}:{33+4*j}], v20 offset:{128*j}"); e(f"ds_read_b64_tr_b16 v[{34+4*j}:{35+4*j}], v20 offset:{128*j+4*656}")
    e("s_waitcnt lgkmcnt(0)")
    for j in range(5): e(f"s_mov_b32 s31, {4096*j}"); e(f"buffer_store_dwordx4 v[{32+4*j}:{35+4*j}], v21, s[36:39], s31 offen{STF}")
    stamp()
    if STAMP: e("s_waitcnt vmcnt(0)")
    stamp(); stamp_out("k0",16,int(os.environ.get('K0WG','300')))
    e("s_endpgm")
    lab("k0_rep2")
    e("s_cmp_ge_u32 s2, 584"); e("s_cbranch_scc1 k0_fin")
    e("s_load_dwordx2 s[6:7], s[0:1], 16"); e("s_load_dwordx2 s[8:9], s[0:1], 48"); e("s_load_dwordx2 s[12:13], s[0:1], 72")
    e("s_sub_u32 s14, s2, 448"); e("s_mul_hi_u32 s15, s14, 252645136"); e("s_mul_i32 s17, s15, 17"); e("s_sub_u32 s17, s14, s17")
    e("v_and_b32 v1, 15, v0"); e("v_bfe_u32 v2, v0, 4, 2"); e("v_lshrrev_b32 v3, 6, v0"); e("v_and_b32 v4, 63, v0")
    e("s_waitcnt lgkmcnt(0)")
    srd(24,6,640*1280); srd(28,8,1536*1280); srd(36,12,8*68*5120,WS_W2)
    e("s_sub_u32 s18, s17, 5"); e("s_cmp_lt_u32 s17, 5")
    for i in range(4): e(f"s_cselect_b32 s{44+i}, s{24+i}, s{28+i}")
    e("s_cselect_b32 s18, s17, s18"); e("s_mul_i32 s48, s18, 163840")
    e("s_mul_i32 s19, s15, 160")
    for j in range(5):
        e(f"v_add_u32 v8, {256*j}, v0"); e("v_mul_u32_u24 v9, 0x199a, v8"); e("v_lshrrev_b32 v9, 16, v9"); e("v_mul_u32_u24 v10, 10, v9"); e("v_sub_u32 v10, v8, v10")
        e("v_mul_u32_u24 v11, 1280, v9"); e("v_lshl_add_u32 v11, v10, 4, v11"); e("v_add_u32 v11, s19, v11")
        e(f"buffer_load_dwordx4 v[{32+4*j}:{35+4*j}], v11, s[44:47], s48 offen")
        e("v_mul_u32_u24 v11, 176, v9"); e(f"v_lshl_add_u32 v{15+j}, v10, 4, v11")
    e("v_lshrrev_b32 v20, 2, v1"); e("v_lshl_add_u32 v20, v2, 3, v20"); e("v_lshl_add_u32 v20, v3, 5, v20"); e("v_mul_u32_u24 v20, 176, v20"); e("v_and_b32 v22, 3, v1"); e("v_lshl_add_u32 v20, v22, 3, v20")
    e("s_mul_i32 s18, s14, 20480"); e("v_lshlrev_b32 v21, 4, v4"); e("v_mul_u32_u24 v22, 5120, v3"); e("v_add_u32 v21, v21, v22"); e("v_add_u32 v21, s18, v21")
    e("s_waitcnt vmcnt(0)")
    for j in range(5): e(f"ds_write_b128 v{15+j}, v[{32+4*j}:{35+4*j}]")
    e("s_waitcnt lgkmcnt(0)"); e("s_barrier")
    for j in range(5):
        e(f"ds_read_b64_tr_b16 v[{32+4*j}:{33+4*j}], v20 offset:{32*j}"); e(f"ds_read_b64_tr_b16 v[{34+4*j}:{35+4*j}], v20 offset:{32*j+4*176}")
    e("s_waitcnt lgkmcnt(0)")
    for j in range(5): e(f"s_mov_b32 s31, {1024*j}"); e(f"buffer_store_dwordx4 v[{32+4*j}:{35+4*j}], v21, s[36:39], s31 offen{STF}")
    lab("k0_fin")
    e("s_endpgm")
    global K0G; K0G=584

class LQ:
    def __init__(s): s.n=0; s.done=0
    def issue(s): s.n+=1; return s.n
    def wait(s,i):
        if i>s.done:
            assert s.n-i<=15
            e(f"s_waitcnt lgkmcnt({s.n-i})"); s.done=i
class VQ:
    def __init__(s): s.n=0; s.done=0
    def issue(s): s.n+=1; return s.n
    def wait(s,i):
        if i>s.done:
            e(f"s_waitcnt vmcnt({min(63,s.n-i)})"); s.done=i
def k1():
    AS=528; AC=88; HA=248; SV[0]=80
    L.append(".p2align 8"); lab("k1_kernel")
    e("s_cmp_ge_u32 s2, 256"); e("s_cbranch_scc1 k1_end")
    e("s_load_dwordx2 s[12:13], s[0:1], 72")
    stamp()
    if MAP1==0: e("s_lshr_b32 s14, s2, 4"); e("s_and_b32 s15, s2, 15")
    else:
        e("s_and_b32 s15, s2, 3"); e("s_lshl_b32 s15, s15, 2"); e("s_bfe_u32 s17, s2, 0x20003"); e("s_add_u32 s15, s15, s17")
        e("s_bfe_u32 s14, s2, 0x10002"); e("s_lshl_b32 s14, s14, 3"); e("s_lshr_b32 s17, s2, 5"); e("s_add_u32 s14, s14, s17")
    e("v_and_b32 v1, 15, v0"); e("v_bfe_u32 v2, v0, 4, 2"); e("v_lshrrev_b32 v3, 6, v0"); e("v_and_b32 v4, 63, v0")
    e("s_nop 1"); e("v_readfirstlane_b32 s16, v3")
    e("s_waitcnt lgkmcnt(0)")
    srd(20,12,2048*1280,WS_XN); srd(24,12,16*400*1024,WS_W1); srd(36,12,2048*1280,WS_O); srd(40,12,2048*3072,WS_H)
    e("s_lshl_b32 s51, s16, 10"); e("s_mul_i32 s52, s15, 409600")
    e("v_lshlrev_b32 v24, 4, v4"); e("v_add_u32 v25, 61440, v24"); e("v_add_u32 v10, s51, v24"); e("v_add_u32 v27, 61440, v10")
    e("s_lshl_b32 s17, s14, 3"); e("s_sub_u32 s18, s17, 1"); e("s_mul_i32 s18, s18, 20480"); e("v_add_u32 v9, s18, v24")
    e("s_lshl_b32 s18, s16, 1"); e("s_add_u32 s17, s17, s18"); e("s_mul_i32 s17, s17, 20480"); e("v_add_u32 v5, s17, v24"); e("v_add_u32 v6, 20480, v5")
    def G(s):
        sl=s%NS; r=[]
        def dma(j):
            e(f"s_add_u32 m0, s51, {sl*SB+j*4096}"); e(f"s_add_u32 s48, s52, {s*SB+j*4096}")
            e(f"buffer_load_dwordx4 v10, s[24:27], s48 offen lds")
        def al(i):
            if i==0: e(f"s_mov_b32 s49, {s*1024}")
            a=40+12*sl+4*i
            e(f"buffer_load_dwordx4 a[{a}:{a+3}], v{(5,6,9)[i]}, s[20:23], s49 offen")
        return [lambda j=j:dma(j) for j in range(5)]+[lambda i=i:al(i) for i in range(3)]
    for s in range(NS-1):
        for f in G(s): f()
    stamp()
    q=LQ(); fr={}; hf={}
    def rd(s,t):
        sl=s%NS; r=4*((20*s+t)%8)
        e(f"ds_read_b128 a[{r}:{r+3}], v{24+sl//3} offset:{(sl%3)*SB+1024*t}"); fr[(s,t)]=q.issue()
    def rdh(s,k):
        sl=s%NS
        if k==0: e(f"ds_read_b128 a[32:35], v{(10,27)[sl//3]} offset:{(sl%3)*SB}")
        else: e(f"ds_read_b128 a[36:39], v{24+sl//3} offset:{(sl%3)*SB+4096}")
        hf[(s,k)]=q.issue()
    e(f"s_waitcnt vmcnt({8*(NS-2)})"); stamp(); e("s_barrier")
    for t in range(PD): rd(0,t)
    rdh(0,0); rdh(0,1)
    for s in range(20):
        sl=s%NS; ab=40+12*sl
        if s<19:
            e(f"s_waitcnt vmcnt({8*(min(s+NS-2,19)-(s+1))})"); e("s_barrier")
        if s in (0,10): stamp()
        g=G(s+NS-1) if s+NS-1<20 and not (EXP&1) else []
        for t in range(20):
            f=t+PD
            if f<20: rd(s,f)
            elif s<19: rd(s+1,f-20)
            if s<19 and t in (16,17): rdh(s+1,t-16)
            q.wait(fr[(s,t)])
            r=4*((20*s+t)%8)
            for i in range(2):
                a=AC+8*t+4*i
                e(f"v_mfma_f32_16x16x32_bf16 v[{a}:{a+3}], a[{r}:{r+3}], a[{ab+4*i}:{ab+4*i+3}], "+(f"v[{a}:{a+3}]" if s else "0"))
            if t==4:
                q.wait(hf[(s,1)])
                for k in range(2):
                    a=HA+4*k
                    e(f"v_mfma_f32_16x16x32_bf16 v[{a}:{a+3}], a[{32+4*k}:{35+4*k}], a[{ab+8}:{ab+11}], "+(f"v[{a}:{a+3}]" if s else "0"))
            if t%2==1 and g: g.pop(0)()
        assert not g
    e("s_nop 15"); stamp(); e("s_barrier")
    def put(a, addr, off):
        rnd2(a,a+1,28); rnd2(a+2,a+3,29)
        e(f"ds_write_b128 v{addr}, v[{a}:{a+3}] offset:{off}")
    e("v_lshl_add_u32 v4, v3, 5, v1"); e("v_add_u32 v4, 16, v4"); e(f"v_mul_u32_u24 v4, {AS}, v4"); e("v_lshl_add_u32 v4, v2, 4, v4")
    for t in range(8):
        for i in range(2): put(AC+8*t+4*i,4,16*AS*i+64*t)
    e(f"v_mul_u32_u24 v5, {AS}, v1"); e("v_lshl_add_u32 v5, v2, 4, v5"); e("v_lshl_add_u32 v6, v3, 6, v5")
    put(HA,6,0)
    e("s_cmp_lg_u32 s16, 0"); e("s_cbranch_scc1 k1_a"); put(HA+4,5,256); lab("k1_a")
    e("s_lshl_b32 s17, s14, 3"); e("s_lshl_b32 s18, s16, 1"); e("s_add_u32 s17, s17, s18"); e("s_mul_i32 s17, s17, 49152"); e("s_mul_i32 s18, s15, 3072"); e("s_add_u32 s17, s17, s18")
    e("v_lshrrev_b32 v7, 1, v2"); e("v_lshlrev_b32 v7, 8, v7"); e("v_lshl_add_u32 v7, v1, 4, v7"); e("v_and_b32 v8, 1, v2"); e("v_lshl_add_u32 v7, v8, 3, v7"); e("v_add_u32 v7, s17, v7"); e("v_add_u32 v8, 49152, v7")
    e("s_mov_b32 s54, 0xbfb8aa3b"); e("s_mov_b32 s55, 0xbfb8aa3b"); e("s_mov_b32 s56, 1.0"); e("s_mov_b32 s57, 1.0"); e("s_mov_b32 s58, 0xffff0000")
    for t in range(6):
        for i in range(2):
            Gt=AC+8*(8+t)+4*i; U=AC+8*(14+t)+4*i; T=32+8*i
            for k,R in enumerate((Gt,Gt+2,U,U+2)): e(f"v_cvt_pk_bf16_f32 v{T+k}, v{R}, v{R+1}")
            for k,R in enumerate((Gt,Gt+2,U,U+2)): e(f"v_lshlrev_b32 v{R}, 16, v{T+k}"); e(f"v_and_b32 v{R+1}, s58, v{T+k}")
            for k in (0,2): e(f"v_pk_mul_f32 v[{T+k}:{T+k+1}], v[{Gt+k}:{Gt+k+1}], s[54:55]")
            for k in range(4): e(f"v_exp_f32 v{T+k}, v{T+k}")
            for k in (0,2): e(f"v_pk_add_f32 v[{T+k}:{T+k+1}], v[{T+k}:{T+k+1}], s[56:57]")
            for k in range(4): e(f"v_rcp_f32 v{T+k}, v{T+k}")
            for k in (0,2): e(f"v_pk_mul_f32 v[{Gt+k}:{Gt+k+1}], v[{Gt+k}:{Gt+k+1}], v[{T+k}:{T+k+1}]")
            for k in (0,2): e(f"v_cvt_pk_bf16_f32 v{T+4+k}, v{Gt+k}, v{Gt+k+1}")
            for k in (0,2): e(f"v_lshlrev_b32 v{Gt+k}, 16, v{T+4+k}"); e(f"v_and_b32 v{Gt+k+1}, s58, v{T+4+k}")
            for k in (0,2): e(f"v_pk_mul_f32 v[{Gt+k}:{Gt+k+1}], v[{Gt+k}:{Gt+k+1}], v[{U+k}:{U+k+1}]")
            e(f"v_cvt_pk_bf16_f32 v{T+6}, v{Gt}, v{Gt+1}"); e(f"v_cvt_pk_bf16_f32 v{T+7}, v{Gt+2}, v{Gt+3}")
            e(f"buffer_store_dwordx2 v[{T+6}:{T+7}], v{7+i}, s[40:43], 0 offen offset:{(t>>1)*1024+(t&1)*512}{STF}")
    stamp(); e("s_waitcnt lgkmcnt(0)"); e("s_barrier")
    e("v_and_b32 v4, 127, v0"); e("v_lshrrev_b32 v5, 7, v0")
    e("v_add_u32 v6, 16, v4"); e(f"v_mul_u32_u24 v6, {AS}, v6"); e("v_mul_u32_u24 v7, 80, v5"); e("v_add_u32 v6, v6, v7")
    e(f"v_add_u32 v9, {-14*AS}, v6")
    e("s_lshl_b32 s17, s14, 7"); e("v_add_u32 v8, s17, v4")
    q=LQ(); kr={}; vr={}
    for c in range(5): e(f"ds_read_b128 v[{44+4*c}:{47+4*c}], v6 offset:{320+16*c}"); q.issue()
    def rk(w,o,d):
        for c in range(5): e(f"ds_read_b128 v[{96+20*w+4*c}:{99+20*w+4*c}], v9 offset:{(14-2*w)*AS+o+16*c}"); d[w]=q.issue()
    rk(0,0,kr); rk(1,0,kr)
    for w in range(8):
        q.wait(kr[w]); K=96+20*w
        e(f"v_pk_mul_f32 v[40:41], v[44:45], v[{K}:{K+1}]"); e(f"v_pk_mul_f32 v[42:43], v[46:47], v[{K+2}:{K+3}]")
        for d in range(4,20,2): e(f"v_pk_fma_f32 v[{40+(d&2)}:{41+(d&2)}], v[{44+d}:{45+d}], v[{K+d}:{K+d+1}], v[{40+(d&2)}:{41+(d&2)}]")
        if w+2<8: rk(w+2,0,kr)
        rk(w,160,vr)
        e("v_pk_add_f32 v[40:41], v[40:41], v[42:43]"); e(f"v_add_f32 v{32+w}, v40, v41")
        rnd(32+w,40); e(f"v_mul_f32 v{32+w}, 0x3e64f92e, v{32+w}"); rnd(32+w,40)
        e(f"v_cmp_le_u32 vcc, {2*w}, v8"); e("v_mov_b32 v41, 0xce6e6b28"); e("s_nop 0"); e(f"v_cndmask_b32 v{32+w}, v41, v{32+w}, vcc")
    e("v_max3_f32 v40, v32, v33, v34"); e("v_max3_f32 v40, v40, v35, v36"); e("v_max3_f32 v40, v40, v37, v38"); e("v_max_f32 v40, v40, v39")
    e("v_mov_b32 v41, 0")
    for w in range(8): e(f"v_sub_f32 v{32+w}, v{32+w}, v40"); e(f"v_mul_f32 v{32+w}, 0x3fb8aa3b, v{32+w}")
    for w in range(8): e(f"v_exp_f32 v{32+w}, v{32+w}")
    e("s_nop 0")
    for w in range(8): e(f"v_add_f32 v41, v41, v{32+w}")
    e("v_rcp_f32 v41, v41"); e("s_nop 0")
    for w in range(8): e(f"v_mul_f32 v{32+w}, v{32+w}, v41")
    for w in range(0,8,2): rnd2(32+w,33+w,40)
    for w in range(8):
        q.wait(vr[w]); V=96+20*w; P=32+(w&~1); os="op_sel:[0,0,0] op_sel_hi:[0,1,1]" if w%2==0 else "op_sel:[1,0,0] op_sel_hi:[1,1,1]"
        for d in range(0,20,2):
            if w==0: e(f"v_pk_mul_f32 v[{44+d}:{45+d}], v[{P}:{P+1}], v[{V+d}:{V+d+1}] op_sel:[0,0] op_sel_hi:[0,1]")
            else: e(f"v_pk_fma_f32 v[{44+d}:{45+d}], v[{P}:{P+1}], v[{V+d}:{V+d+1}], v[{44+d}:{45+d}] {os}")
    for d in range(10): e(f"v_cvt_pk_bf16_f32 v{64+d}, v{44+2*d}, v{45+2*d}")
    e("v_lshrrev_b32 v9, 4, v8"); e("v_mul_u32_u24 v9, 20480, v9"); e("v_and_b32 v7, 15, v8"); e("v_lshl_add_u32 v9, v7, 4, v9")
    e("v_mul_u32_u24 v7, 20, v5"); e("s_mul_i32 s18, s15, 40"); e("v_add_u32 v7, s18, v7")
    for c in range(5):
        e(f"v_add_u32 v10, {4*c}, v7"); e("v_lshrrev_b32 v11, 5, v10"); e("v_lshl_add_u32 v12, v11, 10, v9"); e("v_bfe_u32 v11, v10, 3, 2"); e("v_lshl_add_u32 v12, v11, 8, v12"); e("v_bfe_u32 v11, v10, 2, 1"); e("v_lshl_add_u32 v12, v11, 3, v12")
        e(f"buffer_store_dwordx2 v[{64+2*c}:{65+2*c}], v12, s[36:39], 0 offen{STF}")
    stamp(); stamp_out("k1",16)
    lab("k1_end"); e("s_endpgm")

def k2():
    NST=17; AC=96; SV[0]=212; PD2=int(os.environ.get('PD2','7'))
    L.append(".p2align 8"); lab("k2_kernel")
    e("s_cmp_ge_u32 s2, 256"); e("s_cbranch_scc1 k2_end")
    e("s_load_dwordx2 s[4:5], s[0:1], 0"); e("s_load_dwordx2 s[10:11], s[0:1], 56"); e("s_load_dwordx2 s[12:13], s[0:1], 72")
    stamp(); e("s_and_b32 s14, s2, 7"); e("s_lshl_b32 s14, s14, 2"); e("s_bfe_u32 s15, s2, 0x20003"); e("s_add_u32 s14, s14, s15"); e("s_lshr_b32 s15, s2, 5")
    e("v_and_b32 v1, 15, v0"); e("v_bfe_u32 v2, v0, 4, 2"); e("v_lshrrev_b32 v3, 6, v0"); e("v_and_b32 v4, 63, v0")
    e("s_nop 1"); e("v_readfirstlane_b32 s16, v3"); e("s_nop 3")
    e("s_lshl_b32 s51, s16, 10")
    e("v_lshlrev_b32 v24, 4, v4"); e("v_add_u32 v10, s51, v24"); e("v_add_u32 v25, 61440, v24")
    e("s_lshl_b32 s17, s14, 2"); e("s_add_u32 s17, s17, s16")
    e("s_mul_i32 s19, s17, 20480"); e("v_add_u32 v6, s19, v24")
    e("s_mul_i32 s19, s17, 49152"); e("v_add_u32 v8, s19, v24")
    e("s_mul_i32 s54, s15, 348160")
    e("s_lshl_b32 s17, s17, 4"); e("v_add_u32 v15, s17, v1"); e("v_mul_u32_u24 v15, 1280, v15"); e("v_lshl_add_u32 v15, v2, 3, v15"); e("s_mul_i32 s19, s15, 160"); e("v_add_u32 v15, s19, v15")
    e("s_waitcnt lgkmcnt(0)")
    srd(24,12,8*68*5120,WS_W2); srd(36,12,2048*1280,WS_O); srd(40,12,2048*3072,WS_H); srd(20,4,2048*1280); srd(32,10,2048*1280)
    vq=VQ(); gl={}
    def G(s):
        sl=s%NS; ko=(s if s<5 else s-5)*4096
        def dma(j):
            e(f"s_add_u32 m0, s51, {sl*SB+j*4096}"); e(f"s_add_u32 s48, s54, {s*SB+j*4096}")
            e(f"buffer_load_dwordx4 v10, s[24:27], s48 offen lds"); gl[s]=vq.issue()
        def al(n):
            if n==0: e(f"s_mov_b32 s49, {ko}")
            a=40+16*sl+4*n
            e(f"buffer_load_dwordx4 a[{a}:{a+3}], v{6 if s<5 else 8}, s[{36 if s<5 else 40}:{39 if s<5 else 43}], s49 offen offset:{1024*n}"); gl[s]=vq.issue()
        return [lambda j=j:dma(j) for j in range(5)]+[lambda n=n:al(n) for n in range(4)]
    for s in range(NS-1):
        for f in G(s): f()
    q=LQ(); fr={}
    def rd(s,n):
        sl=s%NS; r=4*((20*s+n)%10)
        e(f"ds_read_b128 a[{r}:{r+3}], v{24+sl//3} offset:{(sl%3)*SB+1024*n}"); fr[(s,n)]=q.issue()
    vq.wait(gl[0]); e("s_barrier")
    for n in range(PD2): rd(0,n)
    for s in range(NST):
        sl=s%NS
        if s<NST-1:
            vq.wait(gl[s+1]); e("s_barrier")
        g=G(s+NS-1) if s+NS-1<NST else []
        if s==NST-NS+1:
            g=[lambda t=t: (e(f"buffer_load_dwordx2 v[{200+2*t}:{201+2*t}], v15, s[20:23], 0 offen offset:{32*t}"),vq.issue()) for t in range(5)]
        ab=AC+(0 if s<5 else 20)
        for n in range(20):
            f=n+PD2
            if f<20: rd(s,f)
            elif s<NST-1: rd(s+1,f-20)
            q.wait(fr[(s,n)])
            qq,t=n//5,n%5; r=4*((20*s+n)%10)
            a=40+16*sl+4*qq; c=ab+4*t
            e(f"v_mfma_f32_16x16x32_bf16 v[{c}:{c+3}], a[{r}:{r+3}], a[{a}:{a+3}], "+(f"v[{c}:{c+3}]" if (s not in (0,5) or qq) else "0"))
            if g and n%2==1: g.pop(0)()
        assert not g
    stamp(); e("s_waitcnt vmcnt(0)"); e("s_nop 7")
    for t in range(5):
        A=AC+4*t; B=AC+20+4*t
        for r in range(4):
            xr=200+2*t+(r>>1)
            e(f"v_lshlrev_b32 v{28+r}, 16, v{xr}" if r%2==0 else f"v_and_b32 v{28+r}, 0xffff0000, v{xr}")
        rnd2(A,A+1,24); rnd2(A+2,A+3,25); rnd2(B,B+1,26); rnd2(B+2,B+3,27)
        for r in (0,2): e(f"v_pk_add_f32 v[{A+r}:{A+r+1}], v[{A+r}:{A+r+1}], v[{28+r}:{29+r}]")
        rnd2(A,A+1,24); rnd2(A+2,A+3,25)
        for r in (0,2): e(f"v_pk_add_f32 v[{A+r}:{A+r+1}], v[{A+r}:{A+r+1}], v[{B+r}:{B+r+1}]")
        e(f"v_cvt_pk_bf16_f32 v{180+2*t}, v{A}, v{A+1}"); e(f"v_cvt_pk_bf16_f32 v{181+2*t}, v{A+2}, v{A+3}")
        e(f"buffer_store_dwordx2 v[{180+2*t}:{181+2*t}], v15, s[32:35], 0 offen offset:{32*t}")
    stamp(); stamp_out("k2",16)
    lab("k2_end"); e("s_endpgm")

N="parallel_sum__sliding_local_dilated__glu_gated_swiglu__prompt"
hdr=open(f"cdna_kernels/{N}.s.ref").read().split("; Override")[0]
k0(); k1(); k2()
out=hdr+f"; @launch kernel=k0_kernel grid=({K0G},1,1) block=(256,1,1) lds=24576\n; @launch kernel=k1_kernel grid=(256,1,1) block=(256,1,1) lds={NS*SB}\n; @launch kernel=k2_kernel grid=(256,1,1) block=(256,1,1) lds={NS*SB}\n"
out+='.amdgcn_target "amdgcn-amd-amdhsa--gfx950"\n.text\n.globl k0_kernel\n.globl k1_kernel\n.globl k2_kernel\n.p2align 8\n'
out+="\n".join(L)+"\n.section .rodata,\"a\"\n"
for k,nv,ao in (("k0_kernel",56,56),("k1_kernel",256+112,256),("k2_kernel",256+136,256)):
    out+=f""".p2align 6
.amdhsa_kernel {k}
  .amdhsa_next_free_vgpr {nv}
  .amdhsa_next_free_sgpr 102
  .amdhsa_accum_offset {ao}
  .amdhsa_group_segment_fixed_size 0
  .amdhsa_kernarg_size 80
  .amdhsa_user_sgpr_count 2
  .amdhsa_user_sgpr_kernarg_segment_ptr 1
  .amdhsa_system_sgpr_workgroup_id_x 1
.end_amdhsa_kernel
"""
open(os.environ.get("OUT",f"cdna_kernels/{N}.s"),"w").write(out)
```

```python
import os
L=[]
def e(s): L.append("    "+s)
def lab(s): L.append(s+":")
WS_O=0; WS_H=4<<20; WS_W2=28<<20; WS_CNT=31<<20
STAMP=int(os.environ.get('STAMP','0')); _st=[0]
MODE=int(os.environ.get('MODE','1'))
EXP=int(os.environ.get('EXP','0'))
SVB=248
def stamp():
    if not STAMP: return
    i=_st[0]; _st[0]+=1
    assert i<8
    e("s_memtime s[100:101]"); e("s_waitcnt lgkmcnt(0)"); e(f"v_mov_b32 v255, s100") if 0 else e(f"v_accvgpr_write_b32 a{112+i}, s100")
def stamp_out(n,wsg,wg=0):
    if not STAMP: return
    k=_st[0]; _st[0]=0
    e("s_waitcnt lgkmcnt(0)"); e(f"s_cmp_lg_u32 s2, {wg}"); e(f"s_cbranch_scc1 {n}_nost")
    e("s_load_dwordx2 s[88:89], s[0:1], 64"); e("s_waitcnt lgkmcnt(0)"); e("s_mov_b32 s90, 256"); e("s_mov_b32 s91, 0x00020000")
    e(f"s_lshl_b32 s94, s{wsg}, 6"); e("v_mov_b32 v1, 0")
    for i in range(k):
        e(f"v_accvgpr_read_b32 v2, a{112+i}"); e(f"v_accvgpr_read_b32 v3, a112"); e(f"v_sub_u32 v2, v2, v3"); e(f"buffer_store_dword v2, v1, s[88:91], s94 offen offset:{4*i}")
    lab(f"{n}_nost")
def srd(d, lo, nbytes, off=0):
    if off:
        e(f"s_add_u32 s{d}, s{lo}, {off}"); e(f"s_addc_u32 s{d+1}, s{lo+1}, 0")
    else:
        e(f"s_mov_b32 s{d}, s{lo}"); e(f"s_mov_b32 s{d+1}, s{lo+1}")
    e(f"s_mov_b32 s{d+2}, {nbytes}"); e(f"s_mov_b32 s{d+3}, 0x00020000")
def rnd(v, t):
    e(f"v_cvt_pk_bf16_f32 v{t}, v{v}, v{v}"); e(f"v_lshlrev_b32 v{v}, 16, v{t}")
def rnd2(a,b,t):
    e(f"v_cvt_pk_bf16_f32 v{t}, v{a}, v{b}"); e(f"v_lshlrev_b32 v{a}, 16, v{t}"); e(f"v_and_b32 v{b}, 0xffff0000, v{t}")
class LQ:
    def __init__(s): s.n=0; s.done=0
    def issue(s): s.n+=1; return s.n
    def wait(s,i):
        if i>s.done:
            e(f"s_waitcnt lgkmcnt({min(15,s.n-i)})"); s.done=i
class VQ:
    def __init__(s): s.n=0; s.done=0
    def issue(s): s.n+=1; return s.n
    def wait(s,i):
        if i>s.done:
            e(f"s_waitcnt vmcnt({min(63,s.n-i)})"); s.done=i
def k0():
    lab("k0_kernel")
    e("s_cmp_lg_u32 s2, 0"); e("s_cbranch_scc1 k0_fin")
    e("s_load_dwordx2 s[12:13], s[0:1], 72"); e("s_waitcnt lgkmcnt(0)")
    srd(28,12,16384,WS_CNT)
    e("v_lshlrev_b32 v6, 4, v0"); e("v_mov_b32 v8, 0"); e("v_mov_b32 v9, 0"); e("v_mov_b32 v10, 0"); e("v_mov_b32 v11, 0")
    e("buffer_store_dwordx4 v[8:11], v6, s[28:31], 0 offen"); e("buffer_store_dwordx4 v[8:11], v6, s[28:31], 0 offen offset:4095") if 0 else None
    e("v_add_u32 v6, 4096, v6"); e("buffer_store_dwordx4 v[8:11], v6, s[28:31], 0 offen")
    lab("k0_fin"); e("s_endpgm")

SIGW=int(os.environ.get('SIGW','5')); PD=int(os.environ.get('PD','6'))
SB=20480; N1=4; AS=528; XB=N1*SB; GB=32768; AB=81920; AST=18432; W2S=AB+3*AST
STB=XB+144*AS
ST_SQ=STB; ST_SUM=STB+640; ST_SUMH=STB+1280; ST_CS=STB+1536; NON=ST_CS+1280; K1LDS=NON+16
SC=' sc1'
DQ=5; DG=7; DA=10; DH=14; RQ=15; RG=23; RH=25; RA=248
PUT=31; HST=34; AQ=36; AK=37; AR=38; OA=39; K2R=44; K2D=46; CO=47; CW=48; C1=49; PL=50
HL=51; HS=52; WST=53; HD=54; HN=58; WA=62; WR=67; WD=68
def k12():
    AC=88; HC=76; SQ=96; AF=52; HF=32
    L.append(".p2align 8"); lab("k1_kernel")
    e("s_cmp_ge_u32 s2, 256"); e("s_cbranch_scc1 k1_end")
    e("s_load_dwordx4 s[4:7], s[0:1], 0"); e("s_load_dwordx4 s[84:87], s[0:1], 32"); e("s_load_dwordx2 s[12:13], s[0:1], 72")
    e("s_load_dwordx2 s[8:9], s[0:1], 16"); e("s_load_dwordx4 s[88:91], s[0:1], 48")
    if MODE==1: e("s_memrealtime s[96:97]")
    stamp()
    e("s_lshr_b32 s14, s2, 4"); e("s_and_b32 s15, s2, 15")
    e("v_and_b32 v1, 15, v0"); e("v_bfe_u32 v2, v0, 4, 2"); e("v_lshrrev_b32 v3, 6, v0"); e("v_and_b32 v4, 63, v0")
    e("s_nop 1"); e("v_readfirstlane_b32 s16, v3")
    e("v_and_b32 v70, 1, v3"); e("v_lshl_add_u32 v70, v70, 2, v2"); e("v_lshrrev_b32 v71, 1, v1"); e("v_xor_b32 v71, v71, v70"); e("v_and_b32 v72, 1, v1"); e("v_lshl_add_u32 v71, v71, 1, v72")
    e("v_cmp_gt_u32 vcc, 5, v71"); e("v_mov_b32 v72, 2480"); e("v_mov_b32 v73, 1280"); e("s_nop 0"); e("v_cndmask_b32 v72, v72, v73, vcc")
    e("v_cmp_gt_u32 vcc, 10, v71"); e("v_mov_b32 v73, -160"); e("s_nop 1"); e("v_cndmask_b32 v72, v73, v72, vcc")
    e("v_cmp_ne_u32 s[44:45], 15, v71")
    e("v_lshl_add_u32 v72, v71, 4, v72"); e("s_mul_i32 s17, s15, 80"); e("v_add_u32 v72, s17, v72")
    e("v_lshl_add_u32 v73, v3, 3, v2"); e("v_mul_u32_u24 v73, 3840, v73"); e(f"v_add_u32 v{DQ}, v72, v73"); e(f"v_add_u32 v{DQ+1}, {15360-1024}, v{DQ}")
    e("v_and_b32 v70, 1, v3"); e("v_mul_u32_u24 v70, 192, v70"); e("v_add_u32 v70, v70, v4"); e("s_mul_i32 s17, s15, 192")
    for j in range(3):
        e(f"v_add_u32 v71, {64*j}, v70"); e("v_mul_u32_u24 v72, 0x5556, v71"); e("v_lshrrev_b32 v72, 18, v72"); e("v_mul_u32_u24 v73, 12, v72"); e("v_sub_u32 v73, v71, v73")
        e("v_bfe_u32 v74, v72, 3, 1"); e("v_lshlrev_b32 v74, 1, v74"); e("v_xor_b32 v73, v73, v74")
        e("v_mul_u32_u24 v72, 3072, v72"); e("v_lshl_add_u32 v72, v73, 4, v72"); e(f"v_add_u32 v{DG+j}, s17, v72"); (e(f"v_subrev_u32 v{DG+j}, {1024*j}, v{DG+j}") if j else None)
    e("v_lshrrev_b32 v70, 3, v4"); e("v_and_b32 v71, 7, v4"); e("v_xor_b32 v71, v71, v2"); e("v_xor_b32 v72, 4, v71")
    e("s_lshl_b32 s17, s14, 7"); e("v_lshl_add_u32 v73, v3, 5, v70"); e("v_add_u32 v73, s17, v73"); e("v_mul_u32_u24 v73, 1280, v73")
    e(f"v_lshl_add_u32 v{DA}, v71, 4, v73"); e(f"v_lshl_add_u32 v{DA+1}, v72, 4, v73"); e(f"v_add_u32 v{DA+1}, {10240-1024}, v{DA+1}"); e(f"v_add_u32 v{DA+2}, {20480-2048}, v{DA}"); e(f"v_add_u32 v{DA+3}, {20480-2048}, v{DA+1}")
    e("v_and_b32 v74, 1, v3"); e("v_lshl_add_u32 v73, v74, 3, v70"); e("s_sub_u32 s17, s17, 16"); e("v_add_u32 v73, s17, v73"); e("v_mul_lo_u32 v73, v73, 1280") if 0 else None
    e("v_mul_i32_i24 v73, 1280, v73"); e("v_lshlrev_b32 v74, 2, v74"); e("v_xor_b32 v74, v74, v71"); e(f"v_lshl_add_u32 v{DH}, v74, 4, v73")
    e("s_and_b32 s17, s16, 1"); e("s_cmp_eq_u32 s17, 0"); e("s_cselect_b32 s46, 0xffffff00, -1"); e("s_mov_b32 s47, -1")
    e("s_lshl_b32 s51, s16, 11")
    e("s_mul_i32 s52, s16, 3072"); e(f"s_add_u32 s52, s52, {GB}")
    e("s_lshl_b32 s53, s16, 12"); e(f"s_add_u32 s53, s53, {AB}")
    e("s_lshl_b32 s50, s17, 10"); e(f"s_add_u32 s50, s50, {AB+16384}")
    e("s_waitcnt lgkmcnt(0)")
    srd(20,4,2048*1280); srd(24,6,640*3840)
    e("s_cmp_lt_u32 s16, 2"); e("s_cselect_b32 s28, s84, s86"); e("s_cselect_b32 s29, s85, s87"); e(f"s_mov_b32 s30, {640*3072}"); e("s_mov_b32 s31, 0x00020000")
    srd(64,12,16384,WS_CNT)
    vq=VQ(); gl={}; ga={}
    if MODE==1:
        e("s_or_b32 s96, s96, 1")
        e("s_cmp_eq_u32 s2, 255"); e("s_cselect_b32 s98, 1, 0")
        e("s_cselect_b32 s92, -1, 1"); e("s_cselect_b32 s93, -1, 0"); e("s_mov_b32 s17, 0"); e("s_cselect_b32 s94, 1024, 0"); e("s_cselect_b32 s95, 2048, 0")
        for i in range(4): e(f"v_mov_b32 v{HN+i}, s17")
        e("s_lshl_b32 s17, s2, 4"); e("s_add_u32 s17, s17, 8192"); e("s_mul_i32 s18, s16, 3072")
        e("v_lshlrev_b32 v70, 4, v4"); e("v_add_u32 v71, s18, v70"); e("v_mov_b32 v72, s17"); e("s_cmp_eq_u32 s2, 255"); e("s_cselect_b64 vcc, -1, 0"); e("s_nop 1")
        e("v_cndmask_b32 v73, v72, v71, vcc")
        e("s_mov_b64 exec, s[92:93]")
        for so in ("0","s94","s95"): e(f"buffer_store_dwordx4 v[{HN}:{HN+3}], v73, s[64:67], {so} offen sc1"); vq.issue()
        e("s_mov_b64 exec, -1")
        e("v_lshl_add_u32 v71, v3, 10, v70"); e("v_add_u32 v71, 8192, v71"); e("v_add_u32 v73, 4096, v72"); e(f"v_cndmask_b32 v{HL}, v73, v71, vcc")
        e("v_add_u32 v71, 4096, v71"); e(f"v_cndmask_b32 v{HS}, v72, v71, vcc")
    cur={}
    def setm(sb,imm):
        if cur.get('m0')!=(sb,imm): e(f"s_add_u32 m0, s{sb}, {imm}"); cur['m0']=(sb,imm); return True
    def sets(r,imm):
        if cur.get(r)!=imm: e(f"s_mov_b32 s{r}, {imm}"); cur[r]=imm; return True
    def G(s):
        sl=s%N1
        def dq():
            setm(51,sl*8192); sets(48,s*122880); e("s_mov_b64 exec, s[44:45]")
            for j in range(2): e(f"buffer_load_dwordx4 v{DQ+j}, s[24:27], s48 offen offset:{1024*j} lds"); gl[s]=vq.issue()
            e("s_mov_b64 exec, -1")
        def dg(j):
            a=setm(52,sl*12288); b=sets(49,s*98304)
            if a and not b: e("s_nop 0")
            e(f"buffer_load_dwordx4 v{DG+j}, s[28:31], s49 offen offset:{1024*j} lds"); gl[s]=vq.issue()
        return [lambda j=j:dg(j) for j in range(3)]+[dq]
    def GA(kk):
        sl=kk%3
        def da(j):
            a=setm(53,sl*AST); b=sets(72,kk*128)
            if a and not b: e("s_nop 0")
            e(f"buffer_load_dwordx4 v{DA+j}, s[20:23], s72 offen offset:{1024*j} lds"); ga[kk]=vq.issue()
        def dh():
            setm(50,sl*AST); sets(72,kk*128); e("s_mov_b64 exec, s[46:47]")
            e(f"buffer_load_dwordx4 v{DH}, s[20:23], s72 offen lds"); ga[kk]=vq.issue(); e("s_mov_b64 exec, -1")
        return [lambda j=j:da(j) for j in range(4)]+[dh]
    for s in range(N1-1):
        for f in GA(s): f()
        for f in G(s): f()
    e("v_and_b32 v70, 31, v0"); e("v_lshrrev_b32 v71, 5, v0")
    e("v_and_b32 v72, 3, v70"); e("v_bfe_u32 v73, v70, 3, 1"); e("v_lshl_add_u32 v72, v73, 2, v72"); e("v_xor_b32 v72, 7, v72")
    e("v_lshlrev_b32 v73, 8, v70"); e("v_lshl_add_u32 v73, v72, 5, v73"); e("v_lshl_add_u32 v73, v71, 13, v73"); e("v_add_u32 v73, 16, v73")
    e("v_subrev_u32 v70, 128, v0"); e("v_lshrrev_b32 v71, 3, v70"); e("v_and_b32 v70, 7, v70"); e(f"v_mul_u32_u24 v71, {AST}, v71"); e("v_lshl_add_u32 v71, v70, 4, v71"); e(f"v_add_u32 v71, {AB+16384}, v71")
    e("v_cmp_gt_u32 vcc, 128, v0"); e("s_nop 1"); e("v_cndmask_b32 v73, v71, v73, vcc")
    for i in range(4): e(f"v_mov_b32 v{74+i}, 0x3f803f80")
    e("v_cmp_gt_u32 vcc, 152, v0"); e("s_nop 1"); e("s_mov_b64 exec, vcc"); e("ds_write_b128 v73, v[74:77]"); e("s_mov_b64 exec, -1")
    e("v_lshrrev_b32 v70, 2, v1"); e("v_lshl_add_u32 v71, v2, 3, v70")
    e("v_and_b32 v72, 1, v2"); e("v_lshl_add_u32 v73, v72, 2, v70")
    e("v_and_b32 v74, 3, v1"); e("v_lshlrev_b32 v74, 3, v74"); e("v_lshl_add_u32 v75, v71, 8, v74")
    for t in range(8): e(f"v_xor_b32 v76, {t}, v73"); e(f"v_lshl_add_u32 v{RQ+t}, v76, 5, v75")
    for j in range(2):
        e(f"v_lshl_add_u32 v76, v3, 1, {j}"); e("v_xor_b32 v76, v76, v73"); e(f"v_lshl_add_u32 v{RH+j}, v76, 5, v75")
    e("v_mul_u32_u24 v75, 192, v71"); e("v_add_u32 v75, v75, v74"); e(f"v_add_u32 v75, {GB}, v75")
    e(f"v_lshl_add_u32 v{RG}, v72, 5, v75"); e("v_lshlrev_b32 v76, 5, v72"); e(f"v_sub_u32 v{RG+1}, v75, v76")
    for j in range(3):
        e("v_and_b32 v76, 1, v3"); e("v_mul_u32_u24 v76, 3, v76"); e(f"v_add_u32 v76, {j}, v76"); e("v_xor_b32 v76, v76, v72"); e("v_lshl_add_u32 v76, v76, 5, v75")
        e("v_lshrrev_b32 v77, 1, v3"); e("v_mul_u32_u24 v77, 6144, v77"); e(f"v_add_u32 v{RH+2+j}, v76, v77")
    e("v_lshrrev_b32 v70, 1, v1"); e("v_xor_b32 v70, v70, v2"); e("v_lshlrev_b32 v71, 7, v1"); e("v_lshl_add_u32 v71, v70, 4, v71")
    e(f"v_add_u32 v{RA+2}, {AB+16384}, v71"); e(f"v_xor_b32 v{RA+3}, 64, v{RA+2}")
    e("v_lshl_add_u32 v71, v3, 12, v71"); e(f"v_add_u32 v{RA}, {AB}, v71"); e(f"v_xor_b32 v{RA+1}, 64, v{RA}")
    srd(36,12,2048*1280,WS_O); srd(40,12,2048*3072,WS_H); srd(68,12,8*68*5120,WS_W2); srd(76,90,2048*1280)
    e("s_and_b32 s80, s2, 7"); e("s_lshl_b32 s80, s80, 2"); e("s_bfe_u32 s81, s2, 0x20003"); e("s_add_u32 s80, s80, s81"); e("s_lshr_b32 s81, s2, 5")
    e("s_mul_i32 s82, s81, 348160")
    e(f"v_lshlrev_b32 v{K2R}, 4, v4"); e(f"v_add_u32 v{K2R+1}, 61440, v{K2R}"); e(f"v_lshl_add_u32 v{K2D}, v3, 10, v{K2R}")
    e(f"v_lshl_add_u32 v{PUT}, v3, 5, v1"); e(f"v_add_u32 v{PUT}, 16, v{PUT}"); e(f"v_mul_u32_u24 v{PUT}, {AS}, v{PUT}"); e(f"v_lshl_add_u32 v{PUT}, v2, 4, v{PUT}"); e(f"v_add_u32 v{PUT}, {XB}, v{PUT}")
    e(f"v_mul_u32_u24 v{PUT+1}, {AS}, v1"); e(f"v_lshl_add_u32 v{PUT+1}, v2, 4, v{PUT+1}"); e(f"v_add_u32 v{PUT+1}, {XB}, v{PUT+1}"); e(f"v_lshl_add_u32 v{PUT+1}, v3, 7, v{PUT+1}")
    e("s_lshl_b32 s17, s14, 3"); e("s_lshl_b32 s18, s16, 1"); e("s_add_u32 s17, s17, s18"); e("s_mul_i32 s17, s17, 49152"); e("s_mul_i32 s18, s15, 3072"); e("s_add_u32 s17, s17, s18")
    e(f"v_lshrrev_b32 v{HST}, 1, v2"); e(f"v_lshlrev_b32 v{HST}, 8, v{HST}"); e(f"v_lshl_add_u32 v{HST}, v1, 4, v{HST}"); e("v_and_b32 v70, 1, v2"); e(f"v_lshl_add_u32 v{HST}, v70, 3, v{HST}"); e(f"v_add_u32 v{HST}, s17, v{HST}"); e(f"v_add_u32 v{HST+1}, 49152, v{HST}")
    e("s_mov_b32 s54, 0xbfb8aa3b"); e("s_mov_b32 s55, 0xbfb8aa3b"); e("s_mov_b32 s56, 1.0"); e("s_mov_b32 s57, 1.0"); e("s_mov_b32 s58, 0xffff0000")
    e("v_and_b32 v70, 127, v0"); e("v_lshrrev_b32 v71, 7, v0")
    e(f"v_add_u32 v{AQ}, 16, v70"); e(f"v_mul_u32_u24 v{AQ}, {AS}, v{AQ}"); e("v_mul_u32_u24 v72, 80, v71"); e(f"v_add_u32 v{AQ}, v{AQ}, v72"); e(f"v_add_u32 v{AQ}, {XB}, v{AQ}")
    e(f"v_add_u32 v{AK}, {-14*AS}, v{AQ}")
    e("s_lshl_b32 s17, s14, 7"); e(f"v_add_u32 v{AR}, s17, v70")
    e(f"v_lshrrev_b32 v73, 4, v{AR}"); e("v_mul_u32_u24 v73, 20480, v73"); e(f"v_and_b32 v72, 15, v{AR}"); e("v_lshl_add_u32 v73, v72, 4, v73")
    e("v_mul_u32_u24 v72, 20, v71"); e("s_mul_i32 s18, s15, 40"); e("v_add_u32 v72, s18, v72")
    for c in range(5):
        e(f"v_add_u32 v74, {4*c}, v72"); e("v_lshrrev_b32 v70, 5, v74"); e(f"v_lshl_add_u32 v{OA+c}, v70, 10, v73"); e("v_bfe_u32 v70, v74, 3, 2"); e(f"v_lshl_add_u32 v{OA+c}, v70, 8, v{OA+c}"); e("v_bfe_u32 v70, v74, 2, 1"); e(f"v_lshl_add_u32 v{OA+c}, v70, 3, v{OA+c}")
    e("s_lshl_b32 s17, s14, 7"); e(f"v_mov_b32 v{CO}, s17"); e("s_lshr_b32 s17, s80, 1"); e("s_lshl_b32 s17, s17, 7"); e(f"v_mov_b32 v{CW}, s17"); e(f"v_mov_b32 v{C1}, 1"); e("s_lshl_b32 s17, s81, 7"); e("s_add_u32 s17, s17, 4096"); e(f"v_mov_b32 v{PUT+2}, s17")
    e("s_lshl_b32 s60, s16, 8"); e("s_add_u32 s60, s60, s2"); e("s_mul_hi_u32 s61, s60, 63161284"); e("s_mul_i32 s62, s61, 68"); e("s_sub_u32 s62, s60, s62")
    e("s_sub_u32 s63, s62, 20"); e("s_cmp_lt_u32 s62, 20")
    e("s_cselect_b32 s32, s8, s88"); e("s_cselect_b32 s33, s9, s89"); e(f"s_mov_b32 s34, {1536*1280}"); e(f"s_cselect_b32 s34, {640*1280}, s34"); e("s_mov_b32 s35, 0x00020000")
    e("s_cselect_b32 s63, s62, s63"); e("s_mul_i32 s83, s63, 40960"); e("s_lshl_b32 s62, s61, 7"); e("s_add_u32 s62, s62, 4096"); e("s_mul_i32 s61, s61, 160"); e("s_add_u32 s83, s83, s61")
    e("s_cmp_lt_u32 s60, 544"); e("s_cselect_b32 s83, s83, 0x7f000000"); e("s_cselect_b32 s62, s62, 0x7f000000"); e("v_mov_b32 v30, s62")
    e(f"s_mul_i32 s59, s16, 5120"); e(f"s_add_u32 s59, s59, {W2S}")
    for j in range(5):
        e(f"v_add_u32 v70, {64*j}, v4"); e("v_mul_u32_u24 v71, 0x199a, v70"); e("v_lshrrev_b32 v71, 16, v71"); e("v_mul_u32_u24 v72, 10, v71"); e("v_sub_u32 v72, v70, v72")
        e("v_mul_u32_u24 v71, 1280, v71"); e(f"v_lshl_add_u32 v{WA+j}, v72, 4, v71")
    e("v_lshrrev_b32 v70, 2, v1"); e("v_lshl_add_u32 v70, v2, 3, v70"); e("v_mul_u32_u24 v70, 160, v70"); e("v_and_b32 v71, 3, v1"); e("v_lshl_add_u32 v70, v71, 3, v70"); e(f"v_add_u32 v{WR}, s59, v70")
    e("s_mul_i32 s60, s60, 5120"); e(f"v_add_u32 v{WST}, s60, v{K2R}"); e("s_movk_i32 s99, 4096")
    stamp()
    q=LQ(); fr={}; hf={}; af={}
    def rd(s,t):
        sl=s%N1; r=4*((20*s+t)%8)
        if t<8: a,o,d=RQ+t,sl*8192,1024
        else:
            f,tt=(t-8)//6,(t-8)%6; a,o,d=RG+(tt&1),sl*12288+f*6144+32*tt,768
        e(f"ds_read_b64_tr_b16 a[{r}:{r+1}], v{a} offset:{o}"); q.issue()
        e(f"ds_read_b64_tr_b16 a[{r+2}:{r+3}], v{a} offset:{o+d}"); fr[(s,t)]=q.issue()
    def rdh(s,j):
        sl=s%N1; r=HF+4*j
        o,d=(sl*8192,1024) if j<2 else (sl*12288,768)
        e(f"ds_read_b64_tr_b16 a[{r}:{r+1}], v{RH+j} offset:{o}"); q.issue()
        e(f"ds_read_b64_tr_b16 a[{r+2}:{r+3}], v{RH+j} offset:{o+d}"); hf[(s,j)]=q.issue()
    def rda(s,i):
        r=AF+12*(s%2)+4*i; o=((s//2)%3)*AST
        e(f"ds_read_b128 a[{r}:{r+3}], v{RA+(s&1)+(2 if i==2 else 0)} offset:{o+(2048 if i==1 else 0)}"); af[(s,i)]=q.issue()
    side={}; sw={}
    def wl(j):
        setm(59,1024*j); e("s_nop 0"); e(f"buffer_load_dwordx4 v{WA+j}, s[32:35], s83 offen lds"); sw['l']=vq.issue()
    def tr(j):
        vq.wait(sw['l']); e(f"ds_read_b64_tr_b16 v[{WD+4*j}:{WD+1+4*j}], v{WR} offset:{32*j}"); q.issue(); e(f"ds_read_b64_tr_b16 v[{WD+2+4*j}:{WD+3+4*j}], v{WR} offset:{32*j+640}"); sw['r']=q.issue()
    def wst(j):
        q.wait(sw['r'])
        e(f"buffer_store_dwordx4 v[{WD+4*j}:{WD+3+4*j}], v{WST}, s[68:71], 0 offen offset:{1024*j} sc1" if j<4 else f"buffer_store_dwordx4 v[{WD+4*j}:{WD+3+4*j}], v{WST}, s[68:71], s99 offen sc1"); sw['s']=vq.issue()
    def hload():
        e("s_mov_b64 exec, s[92:93]"); e(f"buffer_load_dwordx4 v[{HD}:{HD+3}], v{HL}, s[64:67], 0 offen sc1"); sw['h']=vq.issue(); e("s_mov_b64 exec, -1")
    _hc=[0]
    def hstore():
        vq.wait(sw['h']); n=_hc[0]; _hc[0]+=1
        e("s_cmp_eq_u32 s98, 0"); e(f"s_cbranch_scc1 k1_hs{n}")
        for i in range(4): e(f"v_mov_b32 v{HN+i}, v{HD+i}")
        lab(f"k1_hs{n}")
        e("s_mov_b64 exec, s[92:93]"); e(f"buffer_store_dwordx4 v[{HN}:{HN+3}], v{HS}, s[64:67], 0 offen sc1"); vq.issue(); e("s_mov_b64 exec, -1")
    def hcheck():
        vq.wait(sw['h'])
        e("s_mov_b32 s61, 0"); e("s_cmp_eq_u32 s98, 0"); e("s_cbranch_scc1 k1_hn")
        lab("k1_hl")
        e(f"buffer_store_dwordx4 v[{HD}:{HD+3}], v{HS}, s[64:67], 0 offen sc1")
        e("v_cmp_ne_u32 vcc, 0xff, v0"); e("s_nop 1"); e("s_mov_b64 s[62:63], vcc"); e(f"v_cmp_eq_u32 vcc, 0, v{HD}"); e("s_nop 1"); e("s_and_b64 vcc, vcc, s[62:63]"); e("s_cbranch_vccz k1_hd")
        e(f"buffer_load_dwordx4 v[{HD}:{HD+3}], v{HL}, s[64:67], 0 offen sc1"); e("s_waitcnt vmcnt(0)")
        e("s_add_u32 s61, s61, 1"); e("s_cmp_lt_u32 s61, 50000"); e("s_cbranch_scc1 k1_hl"); e("s_branch k1_hd")
        lab("k1_hn")
        e(f"v_readfirstlane_b32 s60, v{HD}"); e("s_cmp_eq_u32 s60, s96"); e("s_cbranch_scc1 k1_hd")
        e("s_mov_b64 exec, 1")
        e(f"buffer_store_dwordx4 v[{HN}:{HN+3}], v{HS}, s[64:67], 0 offen sc1"); e(f"buffer_load_dwordx4 v[{HD}:{HD+3}], v{HL}, s[64:67], 0 offen sc1"); e("s_waitcnt vmcnt(0)")
        e("s_mov_b64 exec, -1")
        e("s_add_u32 s61, s61, 1"); e("s_cmp_lt_u32 s61, 50000"); e("s_cbranch_scc1 k1_hn")
        lab("k1_hd")
    def sg():
        vq.wait(sw['s'])
        if MODE==1: hcheck()
        e("s_mov_b64 exec, 1"); e(f"buffer_atomic_add v{C1}, v30, s[64:67], 0 offen"); vq.issue(); e("s_mov_b64 exec, -1")
    def pw(): e(f"buffer_load_dword v{PL}, v{PUT+2}, s[64:67], 0 offen sc1"); sw['p']=vq.issue()
    side[1]=[lambda j=j:wl(j) for j in range(5)]
    side[6]=[lambda j=j:tr(j) for j in range(5)]; side[7]=[lambda j=j:wst(j) for j in range(5)]; side[13]=[sg]; side[18]=[pw]
    if MODE==1:
        for r in range(4):
            side.setdefault(3*r,[]).insert(0,hload); side.setdefault(3*r+2,[]).append(hstore)
    if MODE==1:
        e("s_cmp_lg_u32 s16, 0"); e("s_cbranch_scc1 k1_nn"); e(f"v_mov_b32 v70, {NON}"); e("v_mov_b32 v71, s96"); e("ds_write_b32 v70, v71"); lab("k1_nn")
    vq.wait(gl[0]); e("s_waitcnt lgkmcnt(0)"); e("s_barrier")
    if MODE==1:
        e(f"v_mov_b32 v70, {NON}"); e("ds_read_b32 v71, v70"); e("s_waitcnt lgkmcnt(0)"); e("v_readfirstlane_b32 s96, v71")
        e("s_cmp_eq_u32 s98, 0"); e("s_cselect_b32 s17, s96, 0")
        for i in range(4): e(f"v_mov_b32 v{HN+i}, s17")
        e("s_mov_b64 exec, s[92:93]"); e(f"buffer_store_dwordx4 v[{HN}:{HN+3}], v{HS}, s[64:67], 0 offen sc1"); vq.issue(); e("s_mov_b64 exec, -1")
    for i in range(3): rda(0,i)
    for t in range(PD): rd(0,t)
    HP={3:0,7:1,11:2,15:3,19:4}
    HR={0:0,4:1,8:2,12:3,16:4}
    SP={1:0,5:1,9:2}
    for s in range(20):
        sl=s%N1; ab=AF+12*(s%2)
        if s<19:
            vq.wait(gl[s+1])
            if s%2==1: vq.wait(ga[(s+1)//2])
            e("s_barrier")
        if s==0: stamp()
        g=G(s+N1-1) if s+N1-1<20 else []
        if s%2==1 and (s-1)//2+3<10: g=g+GA((s-1)//2+3)
        for t in range(20):
            f=t+PD
            if f<20: rd(s,f)
            elif s<19: rd(s+1,f-20)
            if t in HR: rdh(s,HR[t])
            if s<19 and t in (12,13,14): rda(s+1,t-12)
            if t==0: q.wait(af[(s,2)])
            q.wait(fr[(s,t|1)])
            r=4*((20*s+t)%8)
            for i in range(2):
                a=AC+8*t+4*i
                e(f"v_mfma_f32_16x16x32_bf16 v[{a}:{a+3}], a[{r}:{r+3}], a[{ab+4*i}:{ab+4*i+3}], "+(f"v[{a}:{a+3}]" if s else "0"))
            if t in HP:
                j=HP[t]; q.wait(hf[(s,j)]); a=HC+4*j
                e(f"v_mfma_f32_16x16x32_bf16 a[{a}:{a+3}], a[{HF+4*j}:{HF+4*j+3}], a[{ab+8}:{ab+11}], "+(f"a[{a}:{a+3}]" if s else "0"))
            if t in SP:
                i=SP[t]; a=SQ+4*i
                e(f"v_mfma_f32_16x16x32_bf16 a[{a}:{a+3}], a[{ab+4*i}:{ab+4*i+3}], a[{ab+4*i}:{ab+4*i+3}], "+(f"a[{a}:{a+3}]" if s else "0"))
            if t%2==1 and g: g.pop(0)()
            if t%2==0 and side.get(s): side[s].pop(0)()
        assert not g and not side.get(s)
    e("s_nop 15"); stamp()
    e("v_lshl_add_u32 v5, v3, 5, v1"); e("v_lshlrev_b32 v5, 2, v5"); e(f"v_add_u32 v5, {STB+64}, v5")
    e(f"v_lshlrev_b32 v6, 2, v1"); e(f"v_add_u32 v6, {STB}, v6"); e("v_lshl_add_u32 v7, v3, 6, v6")
    e("v_lshlrev_b32 v8, 4, v2"); e(f"v_add_u32 v8, {ST_CS}, v8"); e("v_lshl_add_u32 v9, v3, 7, v8"); e("v_mul_u32_u24 v10, 192, v3"); e("v_add_u32 v10, v10, v8"); e("v_add_u32 v10, 512, v10")
    for r in range(4):
        e(f"s_mov_b32 exec_lo, {0x00100001<<r}"); e(f"s_mov_b32 exec_hi, {0x10000100<<r}")
        e(f"ds_write_b32 v5, a{SQ+r}"); e(f"ds_write_b32 v5, a{SQ+4+r} offset:64"); e(f"ds_write_b32 v6, a{SQ+8+r}")
    e("s_mov_b32 exec_lo, 0"); e("s_mov_b32 exec_hi, 0xffff")
    e(f"ds_write_b32 v5, v{AC+56} offset:{ST_SUM-STB}"); e(f"ds_write_b32 v5, v{AC+60} offset:{ST_SUM-STB+64}"); e(f"ds_write_b32 v7, a{HC+4} offset:{ST_SUMH-STB}")
    e("s_mov_b32 exec_lo, 0x00010001"); e("s_mov_b32 exec_hi, 0x00010001")
    for j in range(5): e(f"ds_write_b128 v{9 if j<2 else 10}, a[{HC+4*j}:{HC+4*j+3}] offset:{64*(j if j<2 else j-2)}")
    e("s_mov_b64 exec, -1")
    vq.wait(sw['p'])
    e(f"v_readfirstlane_b32 s60, v{PL}"); e("s_cmp_ge_u32 s60, 68"); e("s_cbranch_scc1 k1_w_d"); e("s_mov_b32 s61, 0")
    lab("k1_w_s")
    e(f"buffer_load_dword v{PL}, v{PUT+2}, s[64:67], 0 offen sc1"); e("s_waitcnt vmcnt(0)"); e(f"v_readfirstlane_b32 s60, v{PL}")
    e("s_add_u32 s61, s61, 1"); e("s_cmp_ge_u32 s60, 68"); e("s_cbranch_scc1 k1_w_d"); e("s_cmp_lt_u32 s61, 50000"); e("s_cbranch_scc1 k1_w_s")
    lab("k1_w_d")
    e("s_waitcnt lgkmcnt(0)"); e("s_barrier")
    NST=17; N2=4; AC2=96; PD2=int(os.environ.get('PD2','7')); g2={}
    e("s_lshl_b32 s51, s16, 10")
    VA_O=6; VA_H=8; VO=7
    def stof(u): return u+5 if u<12 else u-12
    def G2(u):
        sl=u%N2; st=stof(u); ko=(st if st<5 else st-5)*4096
        def dma(j):
            e(f"s_add_u32 m0, s51, {sl*SB+j*4096}"); e(f"s_add_u32 s48, s82, {st*SB+j*4096}")
            e(f"buffer_load_dwordx4 v{K2D}, s[68:71], s48 offen lds"); g2[u]=vq.issue()
        def al(n):
            if n==0: e(f"s_mov_b32 s49, {ko}")
            a=40+16*sl+4*n
            e(f"buffer_load_dwordx4 a[{a}:{a+3}], v{VA_O if st<5 else VA_H}, s[{36 if st<5 else 40}:{39 if st<5 else 43}], s49 offen offset:{1024*n}"); g2[u]=vq.issue()
        return [lambda j=j:dma(j) for j in range(5)],[lambda n=n:al(n) for n in range(4)]
    e(f"ds_read_b32 v12, v5 offset:{ST_SUM-STB}"); e(f"ds_read_b32 v13, v5 offset:{ST_SUM-STB+64}"); e(f"ds_read_b32 v14, v6 offset:{ST_SUMH-STB+192}")
    e("ds_read_b32 v16, v5"); e("ds_read_b32 v17, v5 offset:64"); e("ds_read_b32 v18, v6")
    CSR=52
    q=LQ(); cs={}
    for _ in range(6): q.issue()
    def rcs(t): r=CSR+4*(t%8); e(f"ds_read_b128 v[{r}:{r+3}], v8 offset:{64*t}"); cs[t]=q.issue()
    for j in range(2): e(f"ds_read_b128 v[{80+4*j}:{83+4*j}], v9 offset:{64*j}"); cs[('h',j)]=q.issue()
    for t in range(6): rcs(t)
    pre=[G2(u) for u in range(N2-1)]
    for d,_ in pre:
        for f in d: f()
    q.wait(6)
    for i in range(3):
        m,v=12+i,16+i
        e(f"v_mul_f32 v{m}, 0x3acccccd, v{m}"); e(f"v_mul_f32 v{v}, 0x3acccccd, v{v}")
        e(f"v_fma_f32 v{v}, -v{m}, v{m}, v{v}"); e(f"v_max_f32 v{v}, 0, v{v}"); rnd(m,20); rnd(v,20)
        e(f"v_add_f32 v{v}, 0x3727c5ac, v{v}"); rnd(v,20); e(f"v_sqrt_f32 v{v}, v{v}"); e("s_nop 0"); rnd(v,20); e(f"v_rcp_f32 v{v}, v{v}"); e(f"v_sub_f32 v{m}, 0, v{m}")
    e("s_nop 0")
    def norm(a,c,i):
        p=i&~1; sl="op_sel:[0,0,0] op_sel_hi:[1,0,1]" if i%2==0 else "op_sel:[0,1,0] op_sel_hi:[1,1,1]"
        s2="op_sel:[0,0] op_sel_hi:[1,0]" if i%2==0 else "op_sel:[0,1] op_sel_hi:[1,1]"
        for k in (0,2): e(f"v_pk_fma_f32 v[{a+k}:{a+k+1}], v[{c+k}:{c+k+1}], v[{12+p}:{13+p}], v[{a+k}:{a+k+1}] {sl}")
        for k in (0,2): e(f"v_pk_mul_f32 v[{a+k}:{a+k+1}], v[{a+k}:{a+k+1}], v[{16+p}:{17+p}] {s2}")
    def put(a, addr, off):
        rnd2(a,a+1,28); rnd2(a+2,a+3,29)
        e(f"ds_write_b128 v{addr}, v[{a}:{a+3}] offset:{off}"); q.issue()
    for j in range(2):
        for k in range(4): e(f"v_accvgpr_read_b32 v{20+k}, a{HC+4*j+k}")
        q.wait(cs[('h',j)]); norm(20,80+4*j,2); put(20,PUT+1,64*j)
    for t in range(8):
        q.wait(cs[t])
        for i in range(2): norm(AC+8*t+4*i,CSR+4*(t%8),i)
        rcs(t+6) if t+6<8 else None
        for i in range(2): put(AC+8*t+4*i,PUT,16*AS*i+64*t)
    def rcs2(t):
        r=CSR+8*(t%2); e(f"ds_read_b128 v[{r}:{r+3}], v8 offset:{64*(8+t)}"); q.issue(); e(f"ds_read_b128 v[{r+4}:{r+7}], v8 offset:{64*(14+t)}"); cs[('g',t)]=q.issue()
    rcs2(0); rcs2(1)
    for t in range(6):
        q.wait(cs[('g',t)]); r=CSR+8*(t%2)
        for i in range(2): norm(AC+8*(8+t)+4*i,r,i); norm(AC+8*(14+t)+4*i,r+4,i)
        if t+2<6: rcs2(t+2)
        for i in range(2):
            Gt=AC+8*(8+t)+4*i; U=AC+8*(14+t)+4*i; T=68+8*i
            for k,R in enumerate((Gt,Gt+2,U,U+2)): e(f"v_cvt_pk_bf16_f32 v{T+k}, v{R}, v{R+1}")
            for k,R in enumerate((Gt,Gt+2,U,U+2)): e(f"v_lshlrev_b32 v{R}, 16, v{T+k}"); e(f"v_and_b32 v{R+1}, s58, v{T+k}")
            for k in (0,2): e(f"v_pk_mul_f32 v[{T+k}:{T+k+1}], v[{Gt+k}:{Gt+k+1}], s[54:55]")
            for k in range(4): e(f"v_exp_f32 v{T+k}, v{T+k}")
            for k in (0,2): e(f"v_pk_add_f32 v[{T+k}:{T+k+1}], v[{T+k}:{T+k+1}], s[56:57]")
            for k in range(4): e(f"v_rcp_f32 v{T+k}, v{T+k}")
            for k in (0,2): e(f"v_pk_mul_f32 v[{Gt+k}:{Gt+k+1}], v[{Gt+k}:{Gt+k+1}], v[{T+k}:{T+k+1}]")
            for k in (0,2): e(f"v_cvt_pk_bf16_f32 v{T+4+k}, v{Gt+k}, v{Gt+k+1}")
            for k in (0,2): e(f"v_lshlrev_b32 v{Gt+k}, 16, v{T+4+k}"); e(f"v_and_b32 v{Gt+k+1}, s58, v{T+4+k}")
            for k in (0,2): e(f"v_pk_mul_f32 v[{Gt+k}:{Gt+k+1}], v[{Gt+k}:{Gt+k+1}], v[{U+k}:{U+k+1}]")
            e(f"v_cvt_pk_bf16_f32 v{T+6}, v{Gt}, v{Gt+1}"); e(f"v_cvt_pk_bf16_f32 v{T+7}, v{Gt+2}, v{Gt+3}")
            e(f"buffer_store_dwordx2 v[{T+6}:{T+7}], v{HST+i}, s[40:43], 0 offen offset:{(t>>1)*1024+(t&1)*512}{SC}"); vq.issue()
    stamp(); e("s_waitcnt lgkmcnt(0)"); e("s_barrier")
    def signal(off):
        e("s_mov_b64 exec, 1"); e(f"buffer_atomic_add v{C1}, v{CO}, s[64:67], 0 offen offset:{off}"); vq.issue(); e("s_mov_b64 exec, -1")
    def poll(off):
        e(f"buffer_load_dword v{PL}, v{CW}, s[64:67], 0 offen offset:{off} sc1"); return vq.issue()
    def check(off,nm):
        e(f"v_readfirstlane_b32 s60, v{PL}"); e("s_cmp_ge_u32 s60, 64"); e(f"s_cbranch_scc1 {nm}_d"); e("s_mov_b32 s61, 0")
        lab(f"{nm}_s")
        e(f"buffer_load_dword v{PL}, v{CW}, s[64:67], 0 offen offset:{off} sc1"); e("s_waitcnt vmcnt(0)"); e(f"v_readfirstlane_b32 s60, v{PL}")
        e("s_add_u32 s61, s61, 1"); e("s_cmp_ge_u32 s60, 64"); e(f"s_cbranch_scc1 {nm}_d"); e("s_cmp_lt_u32 s61, 50000"); e(f"s_cbranch_scc1 {nm}_s")
        lab(f"{nm}_d")
    q=LQ(); kr={}; vr={}
    QR=52; LG=72; TT=80; OP=10
    for c in range(5): e(f"ds_read_b128 v[{QR+4*c}:{QR+3+4*c}], v{AQ} offset:{320+16*c}"); q.issue()
    def rk(w,o,d):
        for c in range(5): e(f"ds_read_b128 v[{96+20*w+4*c}:{99+20*w+4*c}], v{AK} offset:{(14-2*w)*AS+o+16*c}"); d[w]=q.issue()
    rk(0,0,kr); rk(1,0,kr)
    for w in range(8):
        q.wait(kr[w]); K=96+20*w
        e(f"v_pk_mul_f32 v[{TT}:{TT+1}], v[{QR}:{QR+1}], v[{K}:{K+1}]"); e(f"v_pk_mul_f32 v[{TT+2}:{TT+3}], v[{QR+2}:{QR+3}], v[{K+2}:{K+3}]")
        for d in range(4,20,2): e(f"v_pk_fma_f32 v[{TT+(d&2)}:{TT+1+(d&2)}], v[{QR+d}:{QR+1+d}], v[{K+d}:{K+d+1}], v[{TT+(d&2)}:{TT+1+(d&2)}]")
        if w+2<8: rk(w+2,0,kr)
        rk(w,160,vr)
        e(f"v_pk_add_f32 v[{TT}:{TT+1}], v[{TT}:{TT+1}], v[{TT+2}:{TT+3}]"); e(f"v_add_f32 v{LG+w}, v{TT}, v{TT+1}")
        rnd(LG+w,TT); e(f"v_mul_f32 v{LG+w}, 0x3e64f92e, v{LG+w}"); rnd(LG+w,TT)
        e(f"v_cmp_le_u32 vcc, {2*w}, v{AR}"); e(f"v_mov_b32 v{TT+1}, 0xce6e6b28"); e("s_nop 0"); e(f"v_cndmask_b32 v{LG+w}, v{TT+1}, v{LG+w}, vcc")
        if w==SIGW: vq.wait(vq.n); signal(0)
    e(f"v_max3_f32 v{TT}, v{LG}, v{LG+1}, v{LG+2}"); e(f"v_max3_f32 v{TT}, v{TT}, v{LG+3}, v{LG+4}"); e(f"v_max3_f32 v{TT}, v{TT}, v{LG+5}, v{LG+6}"); e(f"v_max_f32 v{TT}, v{TT}, v{LG+7}")
    e(f"v_mov_b32 v{TT+1}, 0")
    for w in range(8): e(f"v_sub_f32 v{LG+w}, v{LG+w}, v{TT}"); e(f"v_mul_f32 v{LG+w}, 0x3fb8aa3b, v{LG+w}")
    for w in range(8): e(f"v_exp_f32 v{LG+w}, v{LG+w}")
    e("s_nop 0")
    for w in range(8): e(f"v_add_f32 v{TT+1}, v{TT+1}, v{LG+w}")
    e(f"v_rcp_f32 v{TT+1}, v{TT+1}"); e("s_nop 0")
    for w in range(8): e(f"v_mul_f32 v{LG+w}, v{LG+w}, v{TT+1}")
    for w in range(0,8,2): rnd2(LG+w,LG+1+w,TT)
    for w in range(8):
        q.wait(vr[w]); V=96+20*w; P=LG+(w&~1); osl="op_sel:[0,0,0] op_sel_hi:[0,1,1]" if w%2==0 else "op_sel:[1,0,0] op_sel_hi:[1,1,1]"
        if w==4: ph=poll(0)
        for d in range(0,20,2):
            if w==0: e(f"v_pk_mul_f32 v[{QR+d}:{QR+1+d}], v[{P}:{P+1}], v[{V+d}:{V+d+1}] op_sel:[0,0] op_sel_hi:[0,1]")
            else: e(f"v_pk_fma_f32 v[{QR+d}:{QR+1+d}], v[{P}:{P+1}], v[{V+d}:{V+d+1}], v[{QR+d}:{QR+1+d}] {osl}")
    for d in range(10): e(f"v_cvt_pk_bf16_f32 v{OP+d}, v{QR+2*d}, v{QR+1+2*d}")
    for c in range(5):
        e(f"buffer_store_dwordx2 v[{OP+2*c}:{OP+1+2*c}], v{OA+c}, s[36:39], 0 offen{SC}"); ost=vq.issue()
    stamp()
    e("s_lshl_b32 s17, s80, 2"); e("s_add_u32 s17, s17, s16")
    e("s_mul_i32 s19, s17, 20480"); e(f"v_add_u32 v{VA_O}, s19, v{K2R}")
    e("s_mul_i32 s19, s17, 49152"); e(f"v_add_u32 v{VA_H}, s19, v{K2R}")
    e("s_lshl_b32 s17, s17, 4"); e(f"v_add_u32 v{VO}, s17, v1"); e(f"v_mul_u32_u24 v{VO}, 1280, v{VO}"); e(f"v_lshl_add_u32 v{VO}, v2, 3, v{VO}"); e("s_mul_i32 s19, s81, 160"); e(f"v_add_u32 v{VO}, s19, v{VO}")
    vq.wait(ph); check(0,"k1_h")
    stamp()
    for _,a in pre:
        for f in a: f()
    q=LQ(); fr={}
    def rd2(u,n):
        sl=u%N2; r=4*((20*u+n)%10)
        e(f"ds_read_b128 a[{r}:{r+3}], v{K2R+sl//3} offset:{(sl%3)*SB+1024*n}"); fr[(u,n)]=q.issue()
    vq.wait(g2[0]); signal(2048); e("s_barrier")
    for n in range(PD2): rd2(0,n)
    for u in range(NST):
        sl=u%N2
        if u<NST-1:
            vq.wait(g2[u+1]); e("s_barrier")
        if u+N2-1<NST:
            d,a=G2(u+N2-1); g=d+a
        else: g=[]
        if u==5: g=[lambda: g2.__setitem__('po',poll(2048))]+g
        if u==12-N2+1: vq.wait(g2['po']); check(2048,"k1_o")
        if u==NST-N2+1:
            g=[lambda t=t: (e(f"buffer_load_dwordx2 v[{200+2*t}:{201+2*t}], v{VO}, s[20:23], 0 offen offset:{32*t}"),vq.issue()) for t in range(5)]
        ab=AC2+(0 if u>=12 else 20)
        for n in range(20):
            f=n+PD2
            if f<20: rd2(u,f)
            elif u<NST-1: rd2(u+1,f-20)
            q.wait(fr[(u,n)])
            qq,t=n//5,n%5; r=4*((20*u+n)%10)
            a=40+16*sl+4*qq; c=ab+4*t
            e(f"v_mfma_f32_16x16x32_bf16 v[{c}:{c+3}], a[{r}:{r+3}], a[{a}:{a+3}], "+(f"v[{c}:{c+3}]" if (u not in (0,12) or qq) else "0"))
            if g and n%2==1: g.pop(0)()
        assert not g
    stamp(); e("s_waitcnt vmcnt(0)"); e("s_nop 7")
    for t in range(5):
        A=AC2+4*t; B=AC2+20+4*t
        for r in range(4):
            xr=200+2*t+(r>>1)
            e(f"v_lshlrev_b32 v{28+r}, 16, v{xr}" if r%2==0 else f"v_and_b32 v{28+r}, 0xffff0000, v{xr}")
        rnd2(A,A+1,32); rnd2(A+2,A+3,33); rnd2(B,B+1,34); rnd2(B+2,B+3,35)
        for r in (0,2): e(f"v_pk_add_f32 v[{A+r}:{A+r+1}], v[{A+r}:{A+r+1}], v[{28+r}:{29+r}]")
        rnd2(A,A+1,32); rnd2(A+2,A+3,33)
        for r in (0,2): e(f"v_pk_add_f32 v[{A+r}:{A+r+1}], v[{A+r}:{A+r+1}], v[{B+r}:{B+r+1}]")
        e(f"v_cvt_pk_bf16_f32 v{180+2*t}, v{A}, v{A+1}"); e(f"v_cvt_pk_bf16_f32 v{181+2*t}, v{A+2}, v{A+3}")
        e(f"buffer_store_dwordx2 v[{180+2*t}:{181+2*t}], v{VO}, s[76:79], 0 offen offset:{32*t}")
    stamp_out("k1",16)
    lab("k1_end"); e("s_endpgm")

N="parallel_sum__sliding_local_dilated__glu_gated_swiglu__prompt"
hdr=open(f"cdna_kernels/{N}.s.ref").read().split("; Override")[0]
ks=[("k1_kernel",256+(120 if STAMP else 112),256)]
if MODE==2: k0(); ks=[("k0_kernel",56,56)]+ks
k12()
out=hdr
if MODE==2: out+="; @launch kernel=k0_kernel grid=(1,1,1) block=(256,1,1) lds=0\n"
out+=f"; @launch kernel=k1_kernel grid=(256,1,1) block=(256,1,1) lds={K1LDS}\n"
out+='.amdgcn_target "amdgcn-amd-amdhsa--gfx950"\n.text\n'+("" if MODE==1 else ".globl k0_kernel\n")+'.globl k1_kernel\n.p2align 8\n'
out+="\n".join(L)+"\n.section .rodata,\"a\"\n"
for k,nv,ao in ks:
    out+=f""".p2align 6
.amdhsa_kernel {k}
  .amdhsa_next_free_vgpr {nv}
  .amdhsa_next_free_sgpr 102
  .amdhsa_accum_offset {ao}
  .amdhsa_group_segment_fixed_size 0
  .amdhsa_kernarg_size 80
  .amdhsa_user_sgpr_count 2
  .amdhsa_user_sgpr_kernarg_segment_ptr 1
  .amdhsa_system_sgpr_workgroup_id_x 1
.end_amdhsa_kernel
"""
open(os.environ.get("OUT",f"d1.s"),"w").write(out)
```

```python
import os
L=[]
SPR={'q':[],'n':0,'per':16,'on':False}
def e(s):
    L.append("    "+s)
    if SPR['on'] and s.startswith("v_") and not s.startswith("v_cmp") and not s.startswith("v_readfirst"):
        SPR['n']+=1
        if SPR['n']>=SPR['per'] and SPR['q']:
            SPR['n']=0; SPR['on']=False; SPR['q'].pop(0)(); SPR['on']=True
def lab(s): L.append(s+":")
WS_O=0; WS_H=4<<20; WS_W2=28<<20; WS_CNT=31<<20
STAMP=int(os.environ.get('STAMP','0')); _st=[0]
EXP=int(os.environ.get('EXP','0'))
SA=240
def stamp():
    if not STAMP: return
    i=_st[0]; _st[0]+=1
    assert i<12
    e("s_memtime s[100:101]" if STAMP==1 else "s_memrealtime s[100:101]"); e("s_waitcnt lgkmcnt(0)"); e(f"v_accvgpr_write_b32 a{SA+i}, s100")
def stamp_out(n,wsg,wg=0):
    if not STAMP: return
    k=_st[0]; _st[0]=0
    if STAMP==2:
        e("s_load_dwordx2 s[88:89], s[0:1], 72"); e("s_waitcnt lgkmcnt(0)"); e(f"s_add_u32 s88, s88, {30<<20}"); e("s_addc_u32 s89, s89, 0"); e("s_mov_b32 s90, 65536"); e("s_mov_b32 s91, 0x00020000")
        e(f"s_lshl_b32 s94, s2, 8"); e(f"s_lshl_b32 s95, s{wsg}, 6"); e("s_add_u32 s94, s94, s95"); e("v_mov_b32 v1, 0")
        for i in range(k):
            e(f"v_accvgpr_read_b32 v2, a{SA+i}"); e(f"buffer_store_dword v2, v1, s[88:91], s94 offen offset:{4*i}")
        return
    e("s_waitcnt lgkmcnt(0)"); e(f"s_cmp_lg_u32 s2, {wg}"); e(f"s_cbranch_scc1 {n}_nost")
    e("s_load_dwordx2 s[88:89], s[0:1], 64"); e("s_waitcnt lgkmcnt(0)"); e("s_mov_b32 s90, 256"); e("s_mov_b32 s91, 0x00020000")
    e(f"s_lshl_b32 s94, s{wsg}, 6"); e("v_mov_b32 v1, 0")
    for i in range(k):
        e(f"v_accvgpr_read_b32 v2, a{SA+i}"); e(f"v_accvgpr_read_b32 v3, a{SA}"); e(f"v_sub_u32 v2, v2, v3"); e(f"buffer_store_dword v2, v1, s[88:91], s94 offen offset:{4*i}")
    lab(f"{n}_nost")
def srd(d, lo, nbytes, off=0):
    if off:
        e(f"s_add_u32 s{d}, s{lo}, {off}"); e(f"s_addc_u32 s{d+1}, s{lo+1}, 0")
    else:
        e(f"s_mov_b32 s{d}, s{lo}"); e(f"s_mov_b32 s{d+1}, s{lo+1}")
    e(f"s_mov_b32 s{d+2}, {nbytes}"); e(f"s_mov_b32 s{d+3}, 0x00020000")
def rnd(v, t):
    e(f"v_cvt_pk_bf16_f32 v{t}, v{v}, v{v}"); e(f"v_lshlrev_b32 v{v}, 16, v{t}")
def rnd2(a,b,t):
    e(f"v_cvt_pk_bf16_f32 v{t}, v{a}, v{b}"); e(f"v_lshlrev_b32 v{a}, 16, v{t}"); e(f"v_and_b32 v{b}, 0xffff0000, v{t}")
class LQ:
    def __init__(s): s.n=0; s.done=0
    def issue(s): s.n+=1; return s.n
    def wait(s,i):
        if i>s.done:
            e(f"s_waitcnt lgkmcnt({min(15,s.n-i)})"); s.done=i
class VQ:
    def __init__(s): s.n=0; s.done=0
    def issue(s): s.n+=1; return s.n
    def wait(s,i):
        if i>s.done:
            e(f"s_waitcnt vmcnt({min(63,s.n-i)})"); s.done=i

PD=int(os.environ.get('PD','4')); TOUCH=int(os.environ.get('TOUCH','0')); ROT=int(os.environ.get('ROT','1')); HCK=int(os.environ.get('HCK','2'))
SB=20480; N1=4; AS=528; XB=N1*SB; GB=32768; AB=81920; AST=18432; W2S=AB+3*AST
STB=XB+144*AS
ST_SUM=STB+640; ST_SUMH=STB+1920; ST_CS=STB+2176; NON=ST_CS+1280; K1LDS=NON+16
SC=' sc1'
DQ=5; DG=7; DA=10; DH=14; RQ=15; RG=19; RH=22; WC=27; JK=28; RA=248
PUT=31; W2P=34; HST=35; AQ=39; AK=40; AR=41; OA=42; K2D=47; CO=48; CW=49; C1=50; PL=51
HL=52; HS=53; HD=54; HN=58; WA=62; WR=67; WD=68; WST=29; K2R=30
def k12():
    AC=88; HC=92; SQ=112; AF=52; HF=32
    L.append(".p2align 8"); lab("k1_kernel")
    e("s_cmp_ge_u32 s2, 256"); e("s_cbranch_scc1 k1_end")
    e("s_load_dwordx4 s[4:7], s[0:1], 0"); e("s_load_dwordx4 s[84:87], s[0:1], 32"); e("s_load_dwordx2 s[12:13], s[0:1], 72")
    e("s_load_dwordx2 s[8:9], s[0:1], 16"); e("s_load_dwordx4 s[88:91], s[0:1], 48")
    e("s_memrealtime s[96:97]")
    stamp()
    e("s_lshr_b32 s14, s2, 4"); e("s_and_b32 s15, s2, 15")
    e("v_and_b32 v1, 15, v0"); e("v_bfe_u32 v2, v0, 4, 2"); e("v_lshrrev_b32 v3, 6, v0"); e("v_and_b32 v4, 63, v0")
    e("s_nop 1"); e("v_readfirstlane_b32 s16, v3")
    e("v_and_b32 v70, 1, v3"); e("v_lshl_add_u32 v70, v70, 2, v2"); e("v_lshrrev_b32 v71, 1, v1"); e("v_xor_b32 v71, v71, v70"); e("v_and_b32 v72, 1, v1"); e("v_lshl_add_u32 v71, v71, 1, v72")
    e("v_cmp_gt_u32 vcc, 5, v71"); e("v_mov_b32 v72, 2480"); e("v_mov_b32 v73, 1280"); e("s_nop 0"); e("v_cndmask_b32 v72, v72, v73, vcc")
    e("v_cmp_gt_u32 vcc, 10, v71"); e("v_mov_b32 v73, -160"); e("s_nop 1"); e("v_cndmask_b32 v72, v73, v72, vcc")
    e("v_cmp_ne_u32 s[44:45], 15, v71")
    e("v_lshl_add_u32 v72, v71, 4, v72"); e("s_mul_i32 s17, s15, 80"); e("v_add_u32 v72, s17, v72")
    e("v_lshl_add_u32 v73, v3, 3, v2"); e("v_mul_u32_u24 v73, 3840, v73"); e(f"v_add_u32 v{DQ}, v72, v73"); e(f"v_add_u32 v{DQ+1}, {15360-1024}, v{DQ}")
    e("v_and_b32 v70, 1, v3"); e("v_mul_u32_u24 v70, 192, v70"); e("v_add_u32 v70, v70, v4"); e("s_mul_i32 s17, s15, 192")
    for j in range(3):
        e(f"v_add_u32 v71, {64*j}, v70"); e("v_mul_u32_u24 v72, 0x5556, v71"); e("v_lshrrev_b32 v72, 18, v72"); e("v_mul_u32_u24 v73, 12, v72"); e("v_sub_u32 v73, v71, v73")
        e("v_bfe_u32 v74, v72, 3, 1"); e("v_lshlrev_b32 v74, 1, v74"); e("v_xor_b32 v73, v73, v74")
        e("v_mul_u32_u24 v72, 3072, v72"); e("v_lshl_add_u32 v72, v73, 4, v72"); e(f"v_add_u32 v{DG+j}, s17, v72")
        if j: e(f"v_subrev_u32 v{DG+j}, {1024*j}, v{DG+j}")
    e("v_lshrrev_b32 v70, 3, v4"); e("v_and_b32 v71, 7, v4"); e("v_xor_b32 v71, v71, v2"); e("v_xor_b32 v72, 4, v71")
    e("s_lshl_b32 s17, s14, 7"); e("v_lshl_add_u32 v73, v3, 5, v70"); e("v_add_u32 v73, s17, v73"); e("v_mul_u32_u24 v73, 1280, v73")
    e(f"v_lshl_add_u32 v{DA}, v71, 4, v73"); e(f"v_lshl_add_u32 v{DA+1}, v72, 4, v73"); e(f"v_add_u32 v{DA+1}, {10240-1024}, v{DA+1}"); e(f"v_add_u32 v{DA+2}, {20480-2048}, v{DA}"); e(f"v_add_u32 v{DA+3}, {20480-2048}, v{DA+1}")
    e("v_and_b32 v74, 1, v3"); e("v_lshl_add_u32 v73, v74, 3, v70"); e("s_sub_u32 s17, s17, 16"); e("v_add_u32 v73, s17, v73")
    e("v_mul_i32_i24 v73, 1280, v73"); e("v_lshlrev_b32 v74, 2, v74"); e("v_xor_b32 v74, v74, v71"); e(f"v_lshl_add_u32 v{DH}, v74, 4, v73")
    e("s_and_b32 s17, s16, 1"); e("s_cmp_eq_u32 s17, 0"); e("s_cselect_b32 s46, 0xffffff00, -1"); e("s_mov_b32 s47, -1")
    e("s_lshl_b32 s51, s16, 11")
    e("s_mul_i32 s52, s16, 3072"); e(f"s_add_u32 s52, s52, {GB}")
    e("s_lshl_b32 s53, s16, 12"); e(f"s_add_u32 s53, s53, {AB}")
    e("s_lshl_b32 s50, s17, 10"); e(f"s_add_u32 s50, s50, {AB+16384}")
    if TOUCH:
        e("s_add_u32 s17, s14, 4"); e("s_lshl_b32 s17, s17, 5"); e("v_lshrrev_b32 v70, 1, v4"); e("v_add_u32 v70, s17, v70"); e("v_and_b32 v71, 1, v4")
        e("v_mul_u32_u24 v75, 3072, v70"); e("v_mul_u32_u24 v72, 188, v71"); e("v_add_u32 v75, v75, v72"); e("s_mul_i32 s17, s15, 192"); e("v_add_u32 v75, s17, v75")
        e("v_mul_u32_u24 v76, 3840, v70"); e("v_mul_u32_u24 v72, 76, v71"); e("v_add_u32 v76, v76, v72"); e("s_min_u32 s18, s16, 2"); e("s_mul_i32 s18, s18, 1280"); e("s_mul_i32 s17, s15, 80"); e("s_add_u32 s17, s17, s18"); e("v_add_u32 v76, s17, v76")
        e("v_and_b32 v70, 31, v4"); e("v_lshl_add_u32 v70, v3, 5, v70"); e("s_lshl_b32 s17, s14, 7"); e("v_add_u32 v70, s17, v70"); e("v_mul_u32_u24 v77, 1280, v70"); e("v_lshrrev_b32 v70, 5, v4"); e("v_lshl_add_u32 v77, v70, 7, v77")
    e("s_waitcnt lgkmcnt(0)")
    srd(20,4,2048*1280); srd(24,6,640*3840)
    e("s_cmp_lt_u32 s16, 2"); e("s_cselect_b32 s28, s84, s86"); e("s_cselect_b32 s29, s85, s87"); e(f"s_mov_b32 s30, {640*3072}"); e("s_mov_b32 s31, 0x00020000")
    vq=VQ(); gl={}; ga={}
    if ROT: e("s_sub_u32 s10, s14, 10"); e("s_cmp_lt_u32 s14, 10"); e("s_cselect_b32 s10, s14, s10"); e("s_lshl_b32 s11, s10, 7"); e("s_lshl_b32 s10, s10, 1")
    else: e("s_mov_b32 s10, 0"); e("s_mov_b32 s11, 0")
    cur={}
    def setm(sb,imm):
        if cur.get('m0')!=(sb,imm): e(f"s_add_u32 m0, s{sb}, {imm}"); cur['m0']=(sb,imm); return True
    def sets(r,imm):
        if cur.get(r)!=imm: e(f"s_mov_b32 s{r}, {imm}"); cur[r]=imm; return True
    def G(s):
        sl=s%N1
        def dq():
            setm(51,sl*8192); e("s_mov_b64 exec, s[44:45]")
            for j in range(2): e(f"buffer_load_dwordx4 v{DQ+j}, s[24:27], s48 offen offset:{1024*j} lds"); gl[s]=vq.issue()
            e("s_mov_b64 exec, -1")
        def dg(j):
            a=setm(52,sl*12288)
            if j==0:
                e("s_mul_i32 s49, s10, 98304"); e("s_mul_i32 s48, s10, 122880"); e("s_add_u32 s10, s10, 1"); e("s_cmp_eq_u32 s10, 20"); e("s_cselect_b32 s10, 0, s10")
            elif a: e("s_nop 0")
            e(f"buffer_load_dwordx4 v{DG+j}, s[28:31], s49 offen offset:{1024*j} lds"); gl[s]=vq.issue()
        return [lambda j=j:dg(j) for j in range(3)]+[dq]
    def GA(kk):
        sl=kk%3
        def da(j):
            a=setm(53,sl*AST)
            if j==0:
                e("s_mov_b32 s72, s11"); e("s_add_u32 s11, s11, 128"); e("s_cmp_eq_u32 s11, 1280"); e("s_cselect_b32 s11, 0, s11")
            elif a: e("s_nop 0")
            e(f"buffer_load_dwordx4 v{DA+j}, s[20:23], s72 offen offset:{1024*j} lds"); ga[kk]=vq.issue()
        def dh():
            setm(50,sl*AST); e("s_mov_b64 exec, s[46:47]")
            e(f"buffer_load_dwordx4 v{DH}, s[20:23], s72 offen lds"); ga[kk]=vq.issue(); e("s_mov_b64 exec, -1")
        return [lambda j=j:da(j) for j in range(4)]+[dh]
    for s in range(N1-1):
        for f in GA(s): f()
        for f in G(s): f()
    if TOUCH:
        e(f"buffer_load_dword v{JK}, v75, s[28:31], 0 offen"); vq.issue(); e(f"buffer_load_dword v{JK}, v76, s[24:27], 0 offen"); vq.issue()
        for j in range(4): e(f"buffer_load_dword v{JK}, v77, s[20:23], 0 offen offset:{256*(j+1)}"); vq.issue()
    srd(64,12,16384,WS_CNT)
    e("s_or_b32 s96, s96, 1")
    e("s_cmp_eq_u32 s2, 255"); e("s_cselect_b32 s98, 1, 0")
    e("s_cselect_b32 s92, -1, 1"); e("s_cselect_b32 s93, -1, 0"); e("s_cselect_b32 s94, 1024, 0"); e("s_cselect_b32 s95, 2048, 0")
    for i in range(4): e(f"v_mov_b32 v{HN+i}, 0")
    e("s_lshl_b32 s17, s2, 4"); e("s_add_u32 s17, s17, 8192"); e("s_mul_i32 s18, s16, 3072")
    e("v_lshlrev_b32 v70, 4, v4"); e("v_add_u32 v71, s18, v70"); e("v_mov_b32 v72, s17"); e("s_cmp_eq_u32 s2, 255"); e("s_cselect_b64 vcc, -1, 0"); e("s_nop 1")
    e("v_cndmask_b32 v73, v72, v71, vcc")
    e("s_mov_b64 exec, s[92:93]")
    for so in ("0","s94","s95"): e(f"buffer_store_dwordx4 v[{HN}:{HN+3}], v73, s[64:67], {so} offen sc1"); vq.issue()
    e("s_mov_b64 exec, -1")
    e("v_lshl_add_u32 v71, v3, 10, v70"); e("v_add_u32 v71, 8192, v71"); e("v_add_u32 v73, 4096, v72"); e(f"v_cndmask_b32 v{HL}, v73, v71, vcc")
    e("v_add_u32 v71, 4096, v71"); e(f"v_cndmask_b32 v{HS}, v72, v71, vcc")
    e("v_and_b32 v70, 31, v0"); e("v_lshrrev_b32 v71, 5, v0")
    e("v_and_b32 v72, 3, v70"); e("v_bfe_u32 v73, v70, 3, 1"); e("v_lshl_add_u32 v72, v73, 2, v72"); e("v_xor_b32 v72, 7, v72")
    e("v_lshlrev_b32 v73, 8, v70"); e("v_lshl_add_u32 v73, v72, 5, v73"); e("v_lshl_add_u32 v73, v71, 13, v73"); e("v_add_u32 v73, 16, v73")
    e("v_subrev_u32 v70, 128, v0"); e("v_lshrrev_b32 v71, 3, v70"); e("v_and_b32 v70, 7, v70"); e(f"v_mul_u32_u24 v71, {AST}, v71"); e("v_lshl_add_u32 v71, v70, 4, v71"); e(f"v_add_u32 v71, {AB+16384}, v71")
    e("v_cmp_gt_u32 vcc, 128, v0"); e("s_nop 1"); e("v_cndmask_b32 v73, v71, v73, vcc")
    for i in range(4): e(f"v_mov_b32 v{74+i}, 0x3f803f80")
    e("v_cmp_gt_u32 vcc, 152, v0"); e("s_nop 1"); e("s_mov_b64 exec, vcc"); e("ds_write_b128 v73, v[74:77]"); e("s_mov_b64 exec, -1")
    e("s_cmp_lg_u32 s16, 0"); e("s_cbranch_scc1 k1_nn"); e(f"v_mov_b32 v70, {NON}"); e("v_mov_b32 v71, s96"); e("ds_write_b32 v70, v71"); lab("k1_nn")
    e("v_and_b32 v78, 1, v3"); e("v_lshrrev_b32 v79, 1, v3")
    e("v_lshrrev_b32 v70, 2, v1"); e("v_lshl_add_u32 v71, v2, 3, v70")
    e("v_and_b32 v72, 1, v2"); e("v_lshl_add_u32 v73, v72, 2, v70")
    e("v_and_b32 v74, 3, v1"); e("v_lshlrev_b32 v74, 3, v74"); e("v_lshl_add_u32 v75, v71, 8, v74")
    for t in range(4): e(f"v_lshl_add_u32 v76, v79, 2, {t}"); e("v_xor_b32 v76, v76, v73"); e(f"v_lshl_add_u32 v{RQ+t}, v76, 5, v75")
    for j in range(2):
        e(f"v_lshl_add_u32 v76, v3, 1, {j}"); e("v_xor_b32 v76, v76, v73"); e(f"v_lshl_add_u32 v{RH+j}, v76, 5, v75")
    e("v_mul_u32_u24 v75, 192, v71"); e("v_add_u32 v75, v75, v74"); e(f"v_add_u32 v75, {GB}, v75")
    e("v_mul_u32_u24 v77, 6144, v79")
    for j in range(3):
        e("v_mul_u32_u24 v76, 3, v79"); e(f"v_add_u32 v76, {j}, v76"); e("v_xor_b32 v76, v76, v72"); e(f"v_lshl_add_u32 v{RG+j}, v76, 5, v75")
        e("v_mul_u32_u24 v76, 3, v78"); e(f"v_add_u32 v76, {j}, v76"); e("v_xor_b32 v76, v76, v72"); e("v_lshl_add_u32 v76, v76, 5, v75"); e(f"v_add_u32 v{RH+2+j}, v76, v77")
    e("v_lshrrev_b32 v70, 1, v1"); e("v_xor_b32 v70, v70, v2"); e("v_lshlrev_b32 v71, 7, v1"); e("v_lshl_add_u32 v71, v70, 4, v71")
    e(f"v_add_u32 v{RA+4}, {AB+16384}, v71"); e(f"v_xor_b32 v{RA+5}, 64, v{RA+4}")
    e("v_lshl_add_u32 v71, v78, 13, v71"); e(f"v_add_u32 v71, {AB}, v71")
    e(f"v_lshl_add_u32 v{RA}, v79, 12, v71"); e(f"v_xor_b32 v{RA+1}, 64, v{RA}"); e(f"v_xor_b32 v{RA+2}, 0x1000, v{RA}"); e(f"v_xor_b32 v{RA+3}, 64, v{RA+2}")
    srd(36,12,2048*1280,WS_O); srd(40,12,2048*3072,WS_H); srd(68,12,8*68*5120,WS_W2); srd(76,90,2048*1280)
    e("s_and_b32 s80, s2, 7"); e("s_lshl_b32 s80, s80, 2"); e("s_bfe_u32 s81, s2, 0x20003"); e("s_add_u32 s80, s80, s81"); e("s_lshr_b32 s81, s2, 5")
    e("s_mul_i32 s82, s81, 348160")
    e(f"v_lshlrev_b32 v{K2R}, 4, v4"); e(f"v_mul_u32_u24 v{K2D}, 5120, v3"); e(f"v_add_u32 v{K2D}, v{K2D}, v{K2R}"); e(f"v_add_u32 v{K2D}, s82, v{K2D}")
    e("v_lshlrev_b32 v80, 1, v79"); e("v_lshl_add_u32 v80, v78, 2, v80"); e("v_xor_b32 v81, 2, v80")
    for h in range(2):
        e(f"v_lshl_add_u32 v70, v{80+h}, 4, v1"); e("v_add_u32 v70, 16, v70"); e(f"v_mul_u32_u24 v70, {AS}, v70"); e("v_lshl_add_u32 v70, v2, 4, v70"); e("v_lshl_add_u32 v70, v79, 8, v70"); e(f"v_add_u32 v{PUT+h}, {XB}, v70")
    e(f"v_mul_u32_u24 v70, {AS}, v1"); e("v_lshl_add_u32 v70, v2, 4, v70"); e(f"v_add_u32 v70, {XB}, v70"); e(f"v_lshl_add_u32 v{PUT+2}, v3, 7, v70")
    e("s_lshl_b32 s17, s14, 3"); e("s_mul_i32 s17, s17, 49152"); e("s_mul_i32 s18, s15, 3072"); e("s_add_u32 s17, s17, s18")
    e("v_lshrrev_b32 v70, 1, v2"); e("v_lshlrev_b32 v70, 8, v70"); e("v_lshl_add_u32 v70, v1, 4, v70"); e("v_and_b32 v71, 1, v2"); e("v_lshl_add_u32 v70, v71, 3, v70"); e("v_add_u32 v70, s17, v70"); e("v_mul_u32_u24 v71, 1536, v79"); e("v_add_u32 v70, v70, v71")
    for h in range(2):
        e(f"v_mul_u32_u24 v71, 49152, v{80+h}"); e(f"v_add_u32 v{HST+2*h}, v70, v71"); e(f"v_add_u32 v{HST+2*h+1}, 49152, v{HST+2*h}")
    e("s_mov_b32 s54, 0xbfb8aa3b"); e("s_mov_b32 s55, 0xbfb8aa3b"); e("s_mov_b32 s56, 1.0"); e("s_mov_b32 s57, 1.0"); e("s_mov_b32 s58, 0xffff0000")
    e("v_and_b32 v70, 127, v0"); e("v_lshrrev_b32 v71, 7, v0")
    e(f"v_add_u32 v{AQ}, 16, v70"); e(f"v_mul_u32_u24 v{AQ}, {AS}, v{AQ}"); e("v_mul_u32_u24 v72, 80, v71"); e(f"v_add_u32 v{AQ}, v{AQ}, v72"); e(f"v_add_u32 v{AQ}, {XB}, v{AQ}")
    e(f"v_add_u32 v{AK}, {-14*AS}, v{AQ}")
    e("s_lshl_b32 s17, s14, 7"); e(f"v_add_u32 v{AR}, s17, v70")
    e(f"v_lshrrev_b32 v73, 4, v{AR}"); e("v_mul_u32_u24 v73, 20480, v73"); e(f"v_and_b32 v72, 15, v{AR}"); e("v_lshl_add_u32 v73, v72, 4, v73")
    e("v_mul_u32_u24 v72, 20, v71"); e("s_mul_i32 s18, s15, 40"); e("v_add_u32 v72, s18, v72")
    for c in range(5):
        e(f"v_add_u32 v74, {4*c}, v72"); e("v_lshrrev_b32 v70, 5, v74"); e(f"v_lshl_add_u32 v{OA+c}, v70, 10, v73"); e("v_bfe_u32 v70, v74, 3, 2"); e(f"v_lshl_add_u32 v{OA+c}, v70, 8, v{OA+c}"); e("v_bfe_u32 v70, v74, 2, 1"); e(f"v_lshl_add_u32 v{OA+c}, v70, 3, v{OA+c}")
    e("s_lshl_b32 s17, s14, 7"); e(f"v_mov_b32 v{CO}, s17"); e("s_lshr_b32 s17, s80, 1"); e("s_lshl_b32 s17, s17, 7"); e(f"v_mov_b32 v{CW}, s17"); e(f"v_mov_b32 v{C1}, 1")
    e("s_lshl_b32 s17, s81, 7"); e("s_add_u32 s17, s17, 4096"); e(f"v_mov_b32 v{W2P}, s17")
    e("s_lshl_b32 s60, s16, 8"); e("s_add_u32 s60, s60, s2"); e("s_mul_hi_u32 s61, s60, 63161284"); e("s_mul_i32 s62, s61, 68"); e("s_sub_u32 s62, s60, s62")
    e("s_sub_u32 s63, s62, 20"); e("s_cmp_lt_u32 s62, 20")
    e("s_cselect_b32 s32, s8, s88"); e("s_cselect_b32 s33, s9, s89"); e(f"s_mov_b32 s34, {1536*1280}"); e(f"s_cselect_b32 s34, {640*1280}, s34"); e("s_mov_b32 s35, 0x00020000")
    e("s_cselect_b32 s63, s62, s63"); e("s_mul_i32 s83, s63, 40960"); e("s_lshl_b32 s62, s61, 7"); e("s_add_u32 s62, s62, 4096"); e("s_mul_i32 s61, s61, 160"); e("s_add_u32 s83, s83, s61")
    e("s_cmp_lt_u32 s60, 544"); e("s_cselect_b32 s83, s83, 0x7f000000"); e("s_cselect_b32 s62, s62, 0x7f000000"); e(f"v_mov_b32 v{WC}, s62")
    e(f"s_mul_i32 s59, s16, 5120"); e(f"s_add_u32 s59, s59, {W2S}")
    for j in range(5):
        e(f"v_add_u32 v70, {64*j}, v4"); e("v_mul_u32_u24 v71, 0x199a, v70"); e("v_lshrrev_b32 v71, 16, v71"); e("v_mul_u32_u24 v72, 10, v71"); e("v_sub_u32 v72, v70, v72")
        e("v_mul_u32_u24 v71, 1280, v71"); e(f"v_lshl_add_u32 v{WA+j}, v72, 4, v71")
    e("v_lshrrev_b32 v70, 2, v1"); e("v_lshl_add_u32 v70, v2, 3, v70"); e("v_mul_u32_u24 v70, 160, v70"); e("v_and_b32 v71, 3, v1"); e("v_lshl_add_u32 v70, v71, 3, v70"); e(f"v_add_u32 v{WR}, s59, v70")
    e("s_mul_i32 s60, s60, 5120"); e(f"v_add_u32 v{WST}, s60, v{K2R}"); e("s_movk_i32 s99, 4096")
    e("v_readfirstlane_b32 s73, v80"); e("v_readfirstlane_b32 s74, v81")
    stamp()
    q=LQ(); fr={}; hf={}; af={}
    def rd(s,t):
        sl=s%N1; r=4*((10*s+t)%8)
        if t<4: a,o,d=RQ+t,sl*8192,1024
        else:
            f,j=(t-4)//3,(t-4)%3; a,o,d=RG+j,sl*12288+f*6144,768
        e(f"ds_read_b64_tr_b16 a[{r}:{r+1}], v{a} offset:{o}"); q.issue()
        e(f"ds_read_b64_tr_b16 a[{r+2}:{r+3}], v{a} offset:{o+d}"); fr[(s,t)]=q.issue()
    def rdh(s,j):
        sl=s%N1; r=HF+4*j
        o,d=(sl*8192,1024) if j<2 else (sl*12288,768)
        e(f"ds_read_b64_tr_b16 a[{r}:{r+1}], v{RH+j} offset:{o}"); q.issue()
        e(f"ds_read_b64_tr_b16 a[{r+2}:{r+3}], v{RH+j} offset:{o+d}"); hf[(s,j)]=q.issue()
    def rda(s,i):
        r=AF+20*(s%2)+4*i; o=((s//2)%3)*AST
        e(f"ds_read_b128 a[{r}:{r+3}], v{RA+(s&1)+2*(i>>1)} offset:{o+(2048 if i&1 else 0)}"); af[(s,i)]=q.issue()
    side={}; sw={}
    def wl(j):
        setm(59,1024*j); e("s_nop 0"); e(f"buffer_load_dwordx4 v{WA+j}, s[32:35], s83 offen lds"); sw['l']=vq.issue()
    def tr(j):
        vq.wait(sw['l']); e(f"ds_read_b64_tr_b16 v[{WD+4*j}:{WD+1+4*j}], v{WR} offset:{32*j}"); q.issue(); e(f"ds_read_b64_tr_b16 v[{WD+2+4*j}:{WD+3+4*j}], v{WR} offset:{32*j+640}"); sw['r']=q.issue()
    def wst(j):
        q.wait(sw['r'])
        e(f"buffer_store_dwordx4 v[{WD+4*j}:{WD+3+4*j}], v{WST}, s[68:71], 0 offen offset:{1024*j} sc1" if j<4 else f"buffer_store_dwordx4 v[{WD+4*j}:{WD+3+4*j}], v{WST}, s[68:71], s99 offen sc1"); sw['s']=vq.issue()
    def hload():
        e("s_mov_b64 exec, s[92:93]"); e(f"buffer_load_dwordx4 v[{HD}:{HD+3}], v{HL}, s[64:67], 0 offen sc1"); sw['h']=vq.issue(); e("s_mov_b64 exec, -1")
    _hc=[0]
    def hsend():
        e("s_mov_b64 exec, s[92:93]"); e(f"buffer_store_dwordx4 v[{HN}:{HN+3}], v{HS}, s[64:67], 0 offen sc1"); vq.issue(); e("s_mov_b64 exec, -1")
    def hstore():
        vq.wait(sw['h']); n=_hc[0]; _hc[0]+=1
        e("s_cmp_eq_u32 s98, 0"); e(f"s_cbranch_scc1 k1_hs{n}")
        for i in range(4): e(f"v_mov_b32 v{HN+i}, v{HD+i}")
        lab(f"k1_hs{n}")
        hsend()
    def hcheck():
        vq.wait(sw['h'])
        e("s_mov_b32 s61, 0"); e("s_cmp_eq_u32 s98, 0"); e("s_cbranch_scc1 k1_hn")
        lab("k1_hl")
        e(f"buffer_store_dwordx4 v[{HD}:{HD+3}], v{HS}, s[64:67], 0 offen sc1")
        e("v_cmp_ne_u32 vcc, 0xff, v0"); e("s_nop 1"); e("s_mov_b64 s[62:63], vcc"); e(f"v_cmp_eq_u32 vcc, 0, v{HD}"); e("s_nop 1"); e("s_and_b64 vcc, vcc, s[62:63]"); e("s_cbranch_vccz k1_hd")
        e(f"buffer_load_dwordx4 v[{HD}:{HD+3}], v{HL}, s[64:67], 0 offen sc1"); e("s_waitcnt vmcnt(0)")
        e("s_add_u32 s61, s61, 1"); e("s_cmp_lt_u32 s61, 50000"); e("s_cbranch_scc1 k1_hl"); e("s_branch k1_hd")
        lab("k1_hn")
        e(f"v_readfirstlane_b32 s60, v{HD}"); e("s_cmp_eq_u32 s60, s96"); e("s_cbranch_scc1 k1_hd")
        e("s_mov_b64 exec, 1")
        e(f"buffer_store_dwordx4 v[{HN}:{HN+3}], v{HS}, s[64:67], 0 offen sc1"); e(f"buffer_load_dwordx4 v[{HD}:{HD+3}], v{HL}, s[64:67], 0 offen sc1"); e("s_waitcnt vmcnt(0)")
        e("s_mov_b64 exec, -1")
        e("s_add_u32 s61, s61, 1"); e("s_cmp_lt_u32 s61, 50000"); e("s_cbranch_scc1 k1_hn")
        lab("k1_hd")
    def sg():
        vq.wait(sw['s']); hcheck()
        e("s_mov_b64 exec, 1"); e(f"buffer_atomic_add v{C1}, v{WC}, s[64:67], 0 offen"); vq.issue(); e("s_mov_b64 exec, -1")
    def pw(): e(f"buffer_load_dword v{PL}, v{W2P}, s[64:67], 0 offen sc1"); sw['p']=vq.issue()
    side[1]=[lambda j=j:wl(j) for j in range(5)]
    side[6]=[lambda j=j:tr(j) for j in range(5)]; side[7]=[lambda j=j:wst(j) for j in range(5)]; side[14]=[sg]; side[19]=[pw]
    side[2]=[hsend]
    for r in (3,6,9,12): side.setdefault(r,[]).insert(0,hload)
    for r in (5,8,11): side.setdefault(r,[]).append(hstore)
    vq.wait(gl[0]); e("s_waitcnt lgkmcnt(0)"); e("s_barrier")
    e(f"v_mov_b32 v70, {NON}"); e("ds_read_b32 v71, v70")
    for i in range(5): rda(0,i)
    for t in range(PD): rd(0,t)
    e(f"s_waitcnt lgkmcnt({min(15,q.n)})"); e("v_readfirstlane_b32 s96, v71")
    e("s_cmp_eq_u32 s98, 0"); e("s_cselect_b32 s17, s96, 0")
    for i in range(4): e(f"v_mov_b32 v{HN+i}, s17")
    hsend()
    HP={3:0,7:1,11:2,15:3,19:4}
    HR={0:0,4:1,8:2,12:3,16:4}
    SP={1:0,5:1,9:4}
    for s in range(20):
        sl=s%N1; ab=AF+20*(s%2)
        if s<19:
            vq.wait(gl[s+1])
            if s%2==1: vq.wait(ga[(s+1)//2])
            e("s_barrier")
        if s==0: stamp()
        g=G(s+N1-1) if s+N1-1<20 else []
        if EXP&1: g=[]; gl[s+N1-1]=0
        if s%2==1 and (s-1)//2+3<10:
            if EXP&2: ga[(s-1)//2+3]=0
            else: g=g+GA((s-1)//2+3)
        for t2 in range(20):
            t=t2>>1
            if t2%2==0:
                f=t+PD
                if f<10: rd(s,f)
                elif s<19: rd(s+1,f-10)
            if t2 in HR: rdh(s,HR[t2])
            if s<19 and t2 in (9,11,13,15,17): rda(s+1,(t2-9)//2)
            if t2==0: q.wait(af[(s,4)])
            q.wait(fr[(s,t)])
            r=4*((10*s+t)%8)
            for i in range(2*(t2&1),2*(t2&1)+2):
                a=AC+16*t+4*i
                if EXP&4 and s: continue
                e(f"v_mfma_f32_16x16x32_bf16 v[{a}:{a+3}], a[{r}:{r+3}], a[{ab+4*i}:{ab+4*i+3}], "+(f"v[{a}:{a+3}]" if s else "0"))
            if t2 in HP:
                j=HP[t2]; q.wait(hf[(s,j)]); a=HC+4*j
                e(f"v_mfma_f32_16x16x32_bf16 a[{a}:{a+3}], a[{HF+4*j}:{HF+4*j+3}], a[{ab+16}:{ab+19}], "+(f"a[{a}:{a+3}]" if s else "0"))
            if t2 in SP:
                i=SP[t2]; a=SQ+4*min(i,2)
                e(f"v_mfma_f32_16x16x32_bf16 a[{a}:{a+3}], a[{ab+4*i}:{ab+4*i+3}], a[{ab+4*i}:{ab+4*i+3}], "+(f"a[{a}:{a+3}]" if s else "0"))
            if t2%2==1 and g: g.pop(0)()
            if t2%2==0 and side.get(s): side[s].pop(0)()
        assert not g and not side.get(s)
    e("s_nop 15"); stamp()
    e("s_lshl_b32 s17, s73, 6"); e(f"s_add_u32 s17, s17, {STB+64}"); e("v_lshlrev_b32 v7, 2, v1"); e("v_add_u32 v5, s17, v7")
    e("s_lshl_b32 s17, s74, 6"); e(f"s_add_u32 s17, s17, {STB+64}"); e("v_add_u32 v6, s17, v7")
    e(f"v_add_u32 v7, {STB}, v7"); e("v_lshl_add_u32 v8, v3, 6, v7")
    e("v_lshlrev_b32 v13, 4, v2"); e(f"v_add_u32 v13, {ST_CS}, v13"); e("v_lshl_add_u32 v9, v3, 7, v13"); e("v_mul_u32_u24 v10, 192, v3"); e("v_add_u32 v10, v10, v13"); e("v_add_u32 v10, 512, v10")
    e("v_lshrrev_b32 v14, 1, v3"); e("v_lshl_add_u32 v11, v14, 8, v13"); e("v_mul_u32_u24 v12, 192, v14"); e("v_add_u32 v12, v12, v13"); e("v_add_u32 v12, 512, v12")
    e("v_mul_u32_u24 v14, 640, v14"); e("v_add_u32 v15, v14, v5"); e("v_add_u32 v16, v14, v6")
    for r in range(4):
        e(f"s_mov_b32 exec_lo, {0x00100001<<r}"); e(f"s_mov_b32 exec_hi, {0x10000100<<r}")
        e(f"ds_write_b32 v5, a{SQ+r}"); e(f"ds_write_b32 v5, a{SQ+4+r} offset:64"); e(f"ds_write_b32 v7, a{SQ+8+r}")
    e("s_mov_b32 exec_lo, 0"); e("s_mov_b32 exec_hi, 0xffff")
    for i in range(4): e(f"ds_write_b32 v{15+(i>>1)}, v{AC+48+4*i} offset:{ST_SUM-STB+64*(i&1)}")
    e(f"ds_write_b32 v8, a{HC+4} offset:{ST_SUMH-STB}")
    e("s_mov_b32 exec_lo, 0x00010001"); e("s_mov_b32 exec_hi, 0x00010001")
    for j in range(5): e(f"ds_write_b128 v{9 if j<2 else 10}, a[{HC+4*j}:{HC+4*j+3}] offset:{64*(j if j<2 else j-2)}")
    e("s_mov_b64 exec, -1")
    vq.wait(sw['p'])
    e(f"v_readfirstlane_b32 s60, v{PL}"); e("s_cmp_ge_u32 s60, 68"); e("s_cbranch_scc1 k1_w_d"); e("s_mov_b32 s61, 0")
    lab("k1_w_s")
    e(f"buffer_load_dword v{PL}, v{W2P}, s[64:67], 0 offen sc1"); e("s_waitcnt vmcnt(0)"); e(f"v_readfirstlane_b32 s60, v{PL}")
    e("s_add_u32 s61, s61, 1"); e("s_cmp_ge_u32 s60, 68"); e("s_cbranch_scc1 k1_w_d"); e("s_cmp_lt_u32 s61, 50000"); e("s_cbranch_scc1 k1_w_s")
    lab("k1_w_d")
    e("s_waitcnt lgkmcnt(0)"); e("s_barrier")
    VB2=WST; b2={}; a2={}
    e(f"v_add_u32 v{VB2}, 4096, v{K2D}")
    def B2(u):
        kb=20+4*u if u<12 else 4*(u-12); base=20*(u if u<12 else u-12)
        def ld(t):
            if t==0: e(f"s_mov_b32 s48, {kb*5120}")
            e(f"buffer_load_dwordx4 a[{base+4*t}:{base+4*t+3}], v{K2D if t<4 else VB2}, s[68:71], s48 offen offset:{1024*(t&3)}"); b2[u]=vq.issue()
        return [lambda t=t:ld(t) for t in range(5)]
    VAH=6; VAO=10; VO=14; PW=15; PR=18; AR0=168; ACH=88; ACO=100
    def A2(u,bias=None):
        sl=u%5
        def al(j):
            if j==0:
                o=4096*(u if u<12 else u-12)
                e(f"s_mov_b32 s49, {o}" if bias is None else f"s_or_b32 s49, s{bias}, {o}")
            a=AR0+16*sl+4*j
            e(f"buffer_load_dwordx4 v[{a}:{a+3}], v{(VAH if u<12 else VAO)+j}, s[{40 if u<12 else 36}:{43 if u<12 else 39}], s49 offen"); a2[u]=vq.issue()
        return [lambda j=j:al(j) for j in range(4)]
    NM=18; RI=24
    for i in range(4): e(f"ds_read_b32 v{NM+i}, v{5+(i>>1)} offset:{ST_SUM-STB+640+64*(i&1)}")
    e(f"ds_read_b32 v{NM+4}, v7 offset:{ST_SUMH-STB+192}")
    for i in range(4): e(f"ds_read_b32 v{RI+i}, v{5+(i>>1)} offset:{64*(i&1)}")
    e(f"ds_read_b32 v{RI+4}, v7")
    CSR=52
    q=LQ(); cs={}
    for _ in range(10): q.issue()
    ORD=[0,1,2,3,4,7,5,8,6,9]
    def rcs(n):
        t=ORD[n]; r=CSR+4*(n%4)
        if t<4: e(f"ds_read_b128 v[{r}:{r+3}], v11 offset:{64*t}")
        else: e(f"ds_read_b128 v[{r}:{r+3}], v12 offset:{64*((t-4)%3)+384*((t-4)//3)}")
        cs[t]=q.issue()
    for j in range(2): e(f"ds_read_b128 v[{84-4*j}:{87-4*j}], v9 offset:{64*j}"); cs[('h',j)]=q.issue()
    for n in range(3): rcs(n)
    for u in range(2):
        for f in B2(u): f()
    q.wait(10)
    for i in range(5):
        m,v=NM+i,RI+i
        e(f"v_mul_f32 v{m}, 0x3acccccd, v{m}"); e(f"v_mul_f32 v{v}, 0x3acccccd, v{v}")
        e(f"v_fma_f32 v{v}, -v{m}, v{m}, v{v}"); e(f"v_max_f32 v{v}, 0, v{v}"); rnd(m,14); rnd(v,14)
        e(f"v_add_f32 v{v}, 0x3727c5ac, v{v}"); rnd(v,14); e(f"v_sqrt_f32 v{v}, v{v}"); e("s_nop 0"); rnd(v,14); e(f"v_rcp_f32 v{v}, v{v}"); e(f"v_sub_f32 v{m}, 0, v{m}")
    e("s_nop 0")
    def norm(a,c,i):
        p=i&~1; sl="op_sel:[0,0,0] op_sel_hi:[1,0,1]" if i%2==0 else "op_sel:[0,1,0] op_sel_hi:[1,1,1]"
        s2="op_sel:[0,0] op_sel_hi:[1,0]" if i%2==0 else "op_sel:[0,1] op_sel_hi:[1,1]"
        for k in (0,2): e(f"v_pk_fma_f32 v[{a+k}:{a+k+1}], v[{c+k}:{c+k+1}], v[{NM+p}:{NM+1+p}], v[{a+k}:{a+k+1}] {sl}")
        for k in (0,2): e(f"v_pk_mul_f32 v[{a+k}:{a+k+1}], v[{a+k}:{a+k+1}], v[{RI+p}:{RI+1+p}] {s2}")
    def put(a, addr, off):
        rnd2(a,a+1,13); rnd2(a+2,a+3,17)
        e(f"ds_write_b128 v{addr}, v[{a}:{a+3}] offset:{off}"); q.issue()
    for j in range(2):
        for k in range(4): e(f"v_accvgpr_read_b32 v{76+k}, a{HC+4*j+k}")
        q.wait(cs[('h',j)]); norm(76,84-4*j,4); put(76,PUT+2,64*j)
    SPR['q']=[f for u in range(2,12) for f in B2(u)]; SPR['per']=int(os.environ.get('PER','14')); SPR['on']=True
    def signal(off):
        e("s_mov_b64 exec, 1"); e(f"buffer_atomic_add v{C1}, v{CO}, s[64:67], 0 offen offset:{off}"); vq.issue(); e("s_mov_b64 exec, -1")
    def poll(off):
        e(f"buffer_load_dword v{PL}, v{CW}, s[64:67], 0 offen offset:{off} sc1"); return vq.issue()
    def spin(off,nm):
        e("s_mov_b32 s61, 0")
        lab(f"{nm}_s")
        e(f"buffer_load_dword v{PL}, v{CW}, s[64:67], 0 offen offset:{off} sc1"); e("s_waitcnt vmcnt(0)"); e(f"v_readfirstlane_b32 s60, v{PL}")
        e("s_add_u32 s61, s61, 1"); e("s_cmp_ge_u32 s60, 64"); e(f"s_cbranch_scc1 {nm}_e"); e("s_cmp_lt_u32 s61, 50000"); e(f"s_cbranch_scc1 {nm}_s")
        lab(f"{nm}_e")
    hn=0
    for n in range(10):
        t=ORD[n]
        q.wait(cs[t])
        for i in range(4): norm(AC+16*t+4*i,CSR+4*(n%4),i)
        if n+3<10: rcs(n+3)
        if t<4:
            for i in range(4): put(AC+16*t+4*i,PUT+(i>>1),16*AS*(i&1)+64*t)
        if t>=7:
            j=t-7
            for i in range(4):
                Gt=AC+16*(4+j)+4*i; U=AC+16*(7+j)+4*i; T=68+8*(hn%2); hn+=1
                for k,R in enumerate((Gt,Gt+2,U,U+2)): e(f"v_cvt_pk_bf16_f32 v{T+k}, v{R}, v{R+1}")
                for k,R in enumerate((Gt,Gt+2,U,U+2)): e(f"v_lshlrev_b32 v{R}, 16, v{T+k}"); e(f"v_and_b32 v{R+1}, s58, v{T+k}")
                for k in (0,2): e(f"v_pk_mul_f32 v[{T+k}:{T+k+1}], v[{Gt+k}:{Gt+k+1}], s[54:55]")
                for k in range(4): e(f"v_exp_f32 v{T+k}, v{T+k}")
                for k in (0,2): e(f"v_pk_add_f32 v[{T+k}:{T+k+1}], v[{T+k}:{T+k+1}], s[56:57]")
                for k in range(4): e(f"v_rcp_f32 v{T+k}, v{T+k}")
                for k in (0,2): e(f"v_pk_mul_f32 v[{Gt+k}:{Gt+k+1}], v[{Gt+k}:{Gt+k+1}], v[{T+k}:{T+k+1}]")
                for k in (0,2): e(f"v_cvt_pk_bf16_f32 v{T+4+k}, v{Gt+k}, v{Gt+k+1}")
                for k in (0,2): e(f"v_lshlrev_b32 v{Gt+k}, 16, v{T+4+k}"); e(f"v_and_b32 v{Gt+k+1}, s58, v{T+4+k}")
                for k in (0,2): e(f"v_pk_mul_f32 v[{Gt+k}:{Gt+k+1}], v[{Gt+k}:{Gt+k+1}], v[{U+k}:{U+k+1}]")
                e(f"v_cvt_pk_bf16_f32 v{T+6}, v{Gt}, v{Gt+1}"); e(f"v_cvt_pk_bf16_f32 v{T+7}, v{Gt+2}, v{Gt+3}")
                e(f"buffer_store_dwordx2 v[{T+6}:{T+7}], v{HST+i}, s[40:43], 0 offen offset:{512*j}{SC}"); hst=vq.issue()
    stamp()
    e("s_lshl_b32 s17, s80, 2")
    for j in range(4):
        e(f"v_add_u32 v19, {j}, v3"); e("v_and_b32 v19, 3, v19"); e("v_add_u32 v20, s17, v19")
        e("v_lshl_add_u32 v21, v3, 10, v30")
        e(f"v_mul_u32_u24 v{VAH+j}, 49152, v20"); e(f"v_add_u32 v{VAH+j}, v{VAH+j}, v21")
        e(f"v_mul_u32_u24 v{VAO+j}, 20480, v20"); e(f"v_add_u32 v{VAO+j}, v{VAO+j}, v21")
        if j: e(f"v_mul_u32_u24 v19, 30720, v19"); e(f"v_add_u32 v19, {5120*(j-1)}, v19"); e(f"v_add_u32 v{PW+j-1}, v19, v{K2R}")
        else: e(f"v_mul_u32_u24 v19, 30720, v19"); e(f"v_add_u32 v{PR}, v19, v{K2R}")
    e("s_add_u32 s17, s17, s16")
    e("s_lshl_b32 s17, s17, 4"); e(f"v_add_u32 v{VO}, s17, v1"); e(f"v_mul_u32_u24 v{VO}, 1280, v{VO}"); e(f"v_lshl_add_u32 v{VO}, v2, 3, v{VO}"); e("s_mul_i32 s19, s81, 160"); e(f"v_add_u32 v{VO}, s19, v{VO}")
    ph=poll(0)
    e("s_waitcnt lgkmcnt(0)"); e("s_barrier")
    q=LQ(); kr={}
    QR=52; LG=72; TT=80; OP=72; KB=(88,108,128,148)
    for c in range(5): e(f"ds_read_b128 v[{QR+4*c}:{QR+3+4*c}], v{AQ} offset:{320+16*c}"); q.issue()
    def rk(n):
        w=n%8; o=160 if n>=8 else 0; b=KB[n%4]
        for c in range(5): e(f"ds_read_b128 v[{b+4*c}:{b+3+4*c}], v{AK} offset:{(14-2*w)*AS+o+16*c}"); kr[n]=q.issue()
    for n in range(3): rk(n)
    SIGW=int(os.environ.get('SIGW','3'))
    for w in range(8):
        rk(w+3)
        q.wait(kr[w]); K=KB[w%4]
        e(f"v_pk_mul_f32 v[{TT}:{TT+1}], v[{QR}:{QR+1}], v[{K}:{K+1}]"); e(f"v_pk_mul_f32 v[{TT+2}:{TT+3}], v[{QR+2}:{QR+3}], v[{K+2}:{K+3}]")
        for d in range(4,20,2): e(f"v_pk_fma_f32 v[{TT+(d&2)}:{TT+1+(d&2)}], v[{QR+d}:{QR+1+d}], v[{K+d}:{K+d+1}], v[{TT+(d&2)}:{TT+1+(d&2)}]")
        e(f"v_pk_add_f32 v[{TT}:{TT+1}], v[{TT}:{TT+1}], v[{TT+2}:{TT+3}]"); e(f"v_add_f32 v{LG+w}, v{TT}, v{TT+1}")
        rnd(LG+w,TT); e(f"v_mul_f32 v{LG+w}, 0x3e64f92e, v{LG+w}"); rnd(LG+w,TT)
        e(f"v_cmp_le_u32 vcc, {2*w}, v{AR}"); e(f"v_mov_b32 v{TT+1}, 0xce6e6b28"); e("s_nop 0"); e(f"v_cndmask_b32 v{LG+w}, v{TT+1}, v{LG+w}, vcc")
        if w==SIGW:
            SPR['on']=False
            while SPR['q']: SPR['q'].pop(0)()
            vq.wait(ph); signal(0)
            e(f"v_readfirstlane_b32 s60, v{PL}"); e("s_cmp_ge_u32 s60, 64"); e("s_cselect_b32 s75, 0, 0x7f000000")
            SPR['q']=[f for u in range(5) for f in A2(u,75)]; SPR['per']=8; SPR['n']=0; SPR['on']=True
    e(f"v_max3_f32 v{TT}, v{LG}, v{LG+1}, v{LG+2}"); e(f"v_max3_f32 v{TT}, v{TT}, v{LG+3}, v{LG+4}"); e(f"v_max3_f32 v{TT}, v{TT}, v{LG+5}, v{LG+6}"); e(f"v_max_f32 v{TT}, v{TT}, v{LG+7}")
    e(f"v_mov_b32 v{TT+1}, 0")
    for w in range(8): e(f"v_sub_f32 v{LG+w}, v{LG+w}, v{TT}"); e(f"v_mul_f32 v{LG+w}, 0x3fb8aa3b, v{LG+w}")
    for w in range(8): e(f"v_exp_f32 v{LG+w}, v{LG+w}")
    e("s_nop 0")
    for w in range(8): e(f"v_add_f32 v{TT+1}, v{TT+1}, v{LG+w}")
    e(f"v_rcp_f32 v{TT+1}, v{TT+1}"); e("s_nop 0")
    for w in range(8): e(f"v_mul_f32 v{LG+w}, v{LG+w}, v{TT+1}")
    for w in range(0,8,2): rnd2(LG+w,LG+1+w,TT)
    for w in range(8):
        if w+11<16: rk(w+11)
        q.wait(kr[8+w]); V=KB[w%4]; P=LG+(w&~1); osl="op_sel:[0,0,0] op_sel_hi:[0,1,1]" if w%2==0 else "op_sel:[1,0,0] op_sel_hi:[1,1,1]"
        if w==7: e("s_barrier")
        for d in range(0,20,2):
            if w==0: e(f"v_pk_mul_f32 v[{QR+d}:{QR+1+d}], v[{P}:{P+1}], v[{V+d}:{V+d+1}] op_sel:[0,0] op_sel_hi:[0,1]")
            else: e(f"v_pk_fma_f32 v[{QR+d}:{QR+1+d}], v[{P}:{P+1}], v[{V+d}:{V+d+1}], v[{QR+d}:{QR+1+d}] {osl}")
    SPR['on']=False
    while SPR['q']: SPR['q'].pop(0)()
    for d in range(10): e(f"v_cvt_pk_bf16_f32 v{OP+d}, v{QR+2*d}, v{QR+1+2*d}")
    for c in range(5):
        e(f"buffer_store_dwordx2 v[{OP+2*c}:{OP+1+2*c}], v{OA+c}, s[36:39], 0 offen{SC}"); ost=vq.issue()
    stamp()
    e("s_cmp_eq_u32 s75, 0"); e("s_cbranch_scc1 k1_hf")
    sv=(vq.n,vq.done,dict(a2))
    e("s_waitcnt vmcnt(0)"); signal(2048)
    spin(0,"k1_h")
    for u in range(5):
        for f in A2(u): f()
    e("s_waitcnt vmcnt(16)"); e("s_branch k1_hg")
    vq.n,vq.done,a2=sv[0],sv[1],sv[2]
    lab("k1_hf")
    vq.wait(a2[0])
    lab("k1_hg")
    a2[0]=0
    for u in range(1,5): a2[u]=vq.n-16+4*u
    vq.done=vq.n-16; ost=vq.n
    assert max(v for k,v in b2.items())<=vq.done
    stamp()
    XR=52
    for u in range(17):
        g=[]
        if u==4:
            vq.wait(ost); e("s_mov_b64 exec, 1"); e(f"buffer_atomic_add v{C1}, v{CO}, s[64:67], s75 offen offset:2048"); vq.issue(); e("s_mov_b64 exec, -1")
        if u==6: g.append(lambda: b2.__setitem__('po',poll(2048)))
        if u==7+1:
            vq.wait(b2['po']); e(f"v_readfirstlane_b32 s60, v{PL}"); e("s_cmp_ge_u32 s60, 64"); e("s_cselect_b32 s75, 0, 0x7f000000")
        if u==12:
            stamp()
            e("s_cmp_eq_u32 s75, 0"); e("s_cbranch_scc1 k1_of")
            sv=(vq.n,vq.done,dict(a2))
            spin(2048,"k1_o")
            for uu in range(12,16):
                for f in A2(uu): f()
            e("s_waitcnt vmcnt(0)")
            vq.n,vq.done,a2=sv[0],sv[1],sv[2]
            lab("k1_of")
            stamp()
        if u>=1 and u+4<17: g+=A2(u+4,75 if 12<=u+4<16 else None)
        if 1<=u<=5: g+=B2(12+u-1)
        if u==13: g+=[lambda t=t: (e(f"buffer_load_dwordx2 v[{XR+2*t}:{XR+1+2*t}], v{VO}, s[20:23], 0 offen offset:{32*t}"),b2.__setitem__('x',vq.issue())) for t in range(5)]
        if 13<=u<=15:
            j=u-12
            g+=[lambda t=t,j=j: e(f"ds_write_b128 v{PW+j-1}, v[{ACH+20*j+4*t}:{ACH+20*j+4*t+3}] offset:{1024*t}") for t in range(5)]
        vq.wait(a2[u]); vq.wait(b2[u])
        bb=20*(u if u<12 else u-12)
        for n in range(20):
            j,t=n//5,n%5
            a=AR0+16*(u%5)+4*j
            if u<12: c=f"v[{ACH+20*j+4*t}:{ACH+20*j+4*t+3}]"
            else: c=f"a[{ACO+20*j+4*t}:{ACO+20*j+4*t+3}]"
            e(f"v_mfma_f32_16x16x32_bf16 {c}, a[{bb+4*t}:{bb+4*t+3}], v[{a}:{a+3}], "+(c if u not in (0,12) else "0"))
            if g and n%2==1: g.pop(0)()
        assert not g
    e("s_nop 7")
    for j in (1,2,3):
        for t in range(5): e(f"ds_write_b128 v{PW+j-1}, a[{ACO+20*j+4*t}:{ACO+20*j+4*t+3}] offset:{15360+1024*t}")
    e("s_waitcnt lgkmcnt(0)"); e("s_barrier")
    q=LQ(); pr={}
    R0=108
    for t in range(5):
        for st in (1,0):
            for sl in range(3):
                r=R0+4*(t*6+st*3+sl); e(f"ds_read_b128 v[{r}:{r+3}], v{PR} offset:{15360*st+5120*sl+1024*t}"); pr[(t,st)]=q.issue()
    vq.wait(b2['x'])
    for t in range(5):
        A=228+4*(t%2); B=ACH+4*t
        for k in range(4): e(f"v_accvgpr_read_b32 v{A+k}, a{ACO+4*t+k}")
        for r in range(4):
            xr=XR+2*t+(r>>1)
            e(f"v_lshlrev_b32 v{28+r}, 16, v{xr}" if r%2==0 else f"v_and_b32 v{28+r}, 0xffff0000, v{xr}")
        for st,D in ((1,A),(0,B)):
            q.wait(pr[(t,st)])
            r=R0+4*(t*6+st*3)
            for k in (0,2): e(f"v_pk_add_f32 v[{r+k}:{r+k+1}], v[{r+k}:{r+k+1}], v[{r+4+k}:{r+5+k}]")
            for k in (0,2): e(f"v_pk_add_f32 v[{D+k}:{D+k+1}], v[{D+k}:{D+k+1}], v[{r+8+k}:{r+9+k}]")
            for k in (0,2): e(f"v_pk_add_f32 v[{D+k}:{D+k+1}], v[{D+k}:{D+k+1}], v[{r+k}:{r+k+1}]")
        rnd2(A,A+1,32); rnd2(A+2,A+3,33); rnd2(B,B+1,34); rnd2(B+2,B+3,35)
        for r in (0,2): e(f"v_pk_add_f32 v[{A+r}:{A+r+1}], v[{A+r}:{A+r+1}], v[{28+r}:{29+r}]")
        rnd2(A,A+1,32); rnd2(A+2,A+3,33)
        for r in (0,2): e(f"v_pk_add_f32 v[{A+r}:{A+r+1}], v[{A+r}:{A+r+1}], v[{B+r}:{B+r+1}]")
        e(f"v_cvt_pk_bf16_f32 v{236+2*t}, v{A}, v{A+1}"); e(f"v_cvt_pk_bf16_f32 v{237+2*t}, v{A+2}, v{A+3}")
        e(f"buffer_store_dwordx2 v[{236+2*t}:{237+2*t}], v{VO}, s[76:79], 0 offen offset:{32*t}")
    stamp()
    stamp_out("k1",16)
    lab("k1_end"); e("s_endpgm")

N="parallel_sum__sliding_local_dilated__glu_gated_swiglu__prompt"
hdr=open(f"cdna_kernels/{N}.s.ref").read().split("; Override")[0]
k12()
out=hdr
out+=f"; @launch kernel=k1_kernel grid=(256,1,1) block=(256,1,1) lds={K1LDS}\n"
out+='.amdgcn_target "amdgcn-amd-amdhsa--gfx950"\n.text\n.globl k1_kernel\n.p2align 8\n'
out+="\n".join(L)+"\n.section .rodata,\"a\"\n"
out+=f""".p2align 6
.amdhsa_kernel k1_kernel
  .amdhsa_next_free_vgpr {256+(256 if STAMP else 240)}
  .amdhsa_next_free_sgpr 102
  .amdhsa_accum_offset 256
  .amdhsa_group_segment_fixed_size 0
  .amdhsa_kernarg_size 80
  .amdhsa_user_sgpr_count 2
  .amdhsa_user_sgpr_kernarg_segment_ptr 1
  .amdhsa_system_sgpr_workgroup_id_x 1
.end_amdhsa_kernel
"""
open(os.environ.get("OUT",f"e1.s"),"w").write(out)
```

```python
import os
L=[]
SPR={'q':[],'n':0,'per':16,'on':False}
def e(s):
    L.append("    "+s)
    if SPR['on'] and s.startswith("v_") and not s.startswith("v_cmp") and not s.startswith("v_readfirst"):
        SPR['n']+=1
        if SPR['n']>=SPR['per'] and SPR['q']:
            SPR['n']=0; SPR['on']=False; SPR['q'].pop(0)(); SPR['on']=True
def lab(s): L.append(s+":")
WS_O=0; WS_H=4<<20; WS_W2=28<<20; WS_CNT=31<<20
STAMP=int(os.environ.get('STAMP','0')); _st=[0]
EXP=int(os.environ.get('EXP','0'))
SA=240
def stamp():
    if not STAMP: return
    i=_st[0]; _st[0]+=1
    assert i<12
    e("s_memtime s[100:101]" if STAMP==1 else "s_memrealtime s[100:101]"); e("s_waitcnt lgkmcnt(0)"); e(f"v_accvgpr_write_b32 a{SA+i}, s100")
def stamp_out(n,wsg,wg=0):
    if not STAMP: return
    k=_st[0]; _st[0]=0
    if STAMP==2:
        e("s_load_dwordx2 s[88:89], s[0:1], 72"); e("s_waitcnt lgkmcnt(0)"); e(f"s_add_u32 s88, s88, {30<<20}"); e("s_addc_u32 s89, s89, 0"); e("s_mov_b32 s90, 65536"); e("s_mov_b32 s91, 0x00020000")
        e(f"s_lshl_b32 s94, s2, 8"); e(f"s_lshl_b32 s95, s{wsg}, 6"); e("s_add_u32 s94, s94, s95"); e("v_mov_b32 v1, 0")
        for i in range(k):
            e(f"v_accvgpr_read_b32 v2, a{SA+i}"); e(f"buffer_store_dword v2, v1, s[88:91], s94 offen offset:{4*i}")
        return
    e("s_waitcnt lgkmcnt(0)"); e(f"s_cmp_lg_u32 s2, {wg}"); e(f"s_cbranch_scc1 {n}_nost")
    e("s_load_dwordx2 s[88:89], s[0:1], 64"); e("s_waitcnt lgkmcnt(0)"); e("s_mov_b32 s90, 256"); e("s_mov_b32 s91, 0x00020000")
    e(f"s_lshl_b32 s94, s{wsg}, 6"); e("v_mov_b32 v1, 0")
    for i in range(k):
        e(f"v_accvgpr_read_b32 v2, a{SA+i}"); e(f"v_accvgpr_read_b32 v3, a{SA}"); e(f"v_sub_u32 v2, v2, v3"); e(f"buffer_store_dword v2, v1, s[88:91], s94 offen offset:{4*i}")
    lab(f"{n}_nost")
def srd(d, lo, nbytes, off=0):
    if off:
        e(f"s_add_u32 s{d}, s{lo}, {off}"); e(f"s_addc_u32 s{d+1}, s{lo+1}, 0")
    else:
        e(f"s_mov_b32 s{d}, s{lo}"); e(f"s_mov_b32 s{d+1}, s{lo+1}")
    e(f"s_mov_b32 s{d+2}, {nbytes}"); e(f"s_mov_b32 s{d+3}, 0x00020000")
def rnd(v, t):
    e(f"v_cvt_pk_bf16_f32 v{t}, v{v}, v{v}"); e(f"v_lshlrev_b32 v{v}, 16, v{t}")
def rnd2(a,b,t):
    e(f"v_cvt_pk_bf16_f32 v{t}, v{a}, v{b}"); e(f"v_lshlrev_b32 v{a}, 16, v{t}"); e(f"v_and_b32 v{b}, 0xffff0000, v{t}")
class LQ:
    def __init__(s): s.n=0; s.done=0
    def issue(s): s.n+=1; return s.n
    def wait(s,i):
        if i>s.done:
            e(f"s_waitcnt lgkmcnt({min(15,s.n-i)})"); s.done=i
class VQ:
    def __init__(s): s.n=0; s.done=0
    def issue(s): s.n+=1; return s.n
    def wait(s,i):
        if i>s.done:
            e(f"s_waitcnt vmcnt({min(63,s.n-i)})"); s.done=i

PD=int(os.environ.get('PD','4')); TOUCH=int(os.environ.get('TOUCH','0')); ROT=int(os.environ.get('ROT','2')); HCK=int(os.environ.get('HCK','2'))
SB=20480; N1=4; AS=528; XB=N1*SB; GB=32768; AB=81920; AST=18432; W2S=AB+3*AST
STB=XB+144*AS
ST_SUM=STB+640; ST_SUMH=STB+1920; ST_CS=STB+2176; NON=ST_CS+1280; K1LDS=NON+16
SC=' sc1'
DQ=5; DG=7; DA=10; DH=14; RQ=15; RG=19; RH=22; WC=27; JK=28; RA=248
PUT=31; W2P=34; HST=35; AQ=39; AK=40; AR=41; OA=42; K2D=47; CO=48; CW=49; C1=50; PL=51
HL=52; HS=53; HD=54; HN=58; WA=62; WR=67; WD=68; WST=29; K2R=30
def k12():
    AC=88; HC=92; SQ=112; AF=52; HF=32
    L.append(".p2align 8"); lab("k1_kernel")
    e("s_cmp_ge_u32 s2, 256"); e("s_cbranch_scc1 k1_end")
    e("s_load_dwordx4 s[4:7], s[0:1], 0"); e("s_load_dwordx4 s[84:87], s[0:1], 32"); e("s_load_dwordx2 s[12:13], s[0:1], 72")
    e("s_load_dwordx2 s[8:9], s[0:1], 16"); e("s_load_dwordx4 s[88:91], s[0:1], 48")
    e("s_memrealtime s[96:97]")
    stamp()
    e("s_lshr_b32 s14, s2, 4"); e("s_and_b32 s15, s2, 15")
    e("v_and_b32 v1, 15, v0"); e("v_bfe_u32 v2, v0, 4, 2"); e("v_lshrrev_b32 v3, 6, v0"); e("v_and_b32 v4, 63, v0")
    e("s_nop 1"); e("v_readfirstlane_b32 s16, v3")
    e("v_and_b32 v70, 1, v3"); e("v_lshl_add_u32 v70, v70, 2, v2"); e("v_lshrrev_b32 v71, 1, v1"); e("v_xor_b32 v71, v71, v70"); e("v_and_b32 v72, 1, v1"); e("v_lshl_add_u32 v71, v71, 1, v72")
    e("v_cmp_gt_u32 vcc, 5, v71"); e("v_mov_b32 v72, 2480"); e("v_mov_b32 v73, 1280"); e("s_nop 0"); e("v_cndmask_b32 v72, v72, v73, vcc")
    e("v_cmp_gt_u32 vcc, 10, v71"); e("v_mov_b32 v73, -160"); e("s_nop 1"); e("v_cndmask_b32 v72, v73, v72, vcc")
    e("v_cmp_ne_u32 s[44:45], 15, v71")
    e("v_lshl_add_u32 v72, v71, 4, v72"); e("s_mul_i32 s17, s15, 80"); e("v_add_u32 v72, s17, v72")
    e("v_lshl_add_u32 v73, v3, 3, v2"); e("v_mul_u32_u24 v73, 3840, v73"); e(f"v_add_u32 v{DQ}, v72, v73"); e(f"v_add_u32 v{DQ+1}, {15360-1024}, v{DQ}")
    e("v_and_b32 v70, 1, v3"); e("v_mul_u32_u24 v70, 192, v70"); e("v_add_u32 v70, v70, v4"); e("s_mul_i32 s17, s15, 192")
    for j in range(3):
        e(f"v_add_u32 v71, {64*j}, v70"); e("v_mul_u32_u24 v72, 0x5556, v71"); e("v_lshrrev_b32 v72, 18, v72"); e("v_mul_u32_u24 v73, 12, v72"); e("v_sub_u32 v73, v71, v73")
        e("v_bfe_u32 v74, v72, 3, 1"); e("v_lshlrev_b32 v74, 1, v74"); e("v_xor_b32 v73, v73, v74")
        e("v_mul_u32_u24 v72, 3072, v72"); e("v_lshl_add_u32 v72, v73, 4, v72"); e(f"v_add_u32 v{DG+j}, s17, v72")
        if j: e(f"v_subrev_u32 v{DG+j}, {1024*j}, v{DG+j}")
    e("v_lshrrev_b32 v70, 3, v4"); e("v_and_b32 v71, 7, v4"); e("v_xor_b32 v71, v71, v2"); e("v_xor_b32 v72, 4, v71")
    e("s_lshl_b32 s17, s14, 7"); e("v_lshl_add_u32 v73, v3, 5, v70"); e("v_add_u32 v73, s17, v73"); e("v_mul_u32_u24 v73, 1280, v73")
    e(f"v_lshl_add_u32 v{DA}, v71, 4, v73"); e(f"v_lshl_add_u32 v{DA+1}, v72, 4, v73"); e(f"v_add_u32 v{DA+1}, {10240-1024}, v{DA+1}"); e(f"v_add_u32 v{DA+2}, {20480-2048}, v{DA}"); e(f"v_add_u32 v{DA+3}, {20480-2048}, v{DA+1}")
    e("v_and_b32 v74, 1, v3"); e("v_lshl_add_u32 v73, v74, 3, v70"); e("s_sub_u32 s17, s17, 16"); e("v_add_u32 v73, s17, v73")
    e("v_mul_i32_i24 v73, 1280, v73"); e("v_lshlrev_b32 v74, 2, v74"); e("v_xor_b32 v74, v74, v71"); e(f"v_lshl_add_u32 v{DH}, v74, 4, v73")
    e("s_and_b32 s17, s16, 1"); e("s_cmp_eq_u32 s17, 0"); e("s_cselect_b32 s46, 0xffffff00, -1"); e("s_mov_b32 s47, -1")
    e("s_lshl_b32 s51, s16, 11")
    e("s_mul_i32 s52, s16, 3072"); e(f"s_add_u32 s52, s52, {GB}")
    e("s_lshl_b32 s53, s16, 12"); e(f"s_add_u32 s53, s53, {AB}")
    e("s_lshl_b32 s50, s17, 10"); e(f"s_add_u32 s50, s50, {AB+16384}")
    if TOUCH:
        e("s_add_u32 s17, s14, 4"); e("s_lshl_b32 s17, s17, 5"); e("v_lshrrev_b32 v70, 1, v4"); e("v_add_u32 v70, s17, v70"); e("v_and_b32 v71, 1, v4")
        e("v_mul_u32_u24 v75, 3072, v70"); e("v_mul_u32_u24 v72, 188, v71"); e("v_add_u32 v75, v75, v72"); e("s_mul_i32 s17, s15, 192"); e("v_add_u32 v75, s17, v75")
        e("v_mul_u32_u24 v76, 3840, v70"); e("v_mul_u32_u24 v72, 76, v71"); e("v_add_u32 v76, v76, v72"); e("s_min_u32 s18, s16, 2"); e("s_mul_i32 s18, s18, 1280"); e("s_mul_i32 s17, s15, 80"); e("s_add_u32 s17, s17, s18"); e("v_add_u32 v76, s17, v76")
        e("v_and_b32 v70, 31, v4"); e("v_lshl_add_u32 v70, v3, 5, v70"); e("s_lshl_b32 s17, s14, 7"); e("v_add_u32 v70, s17, v70"); e("v_mul_u32_u24 v77, 1280, v70"); e("v_lshrrev_b32 v70, 5, v4"); e("v_lshl_add_u32 v77, v70, 7, v77")
    e("s_waitcnt lgkmcnt(0)")
    srd(20,4,2048*1280); srd(24,6,640*3840)
    e("s_cmp_lt_u32 s16, 2"); e("s_cselect_b32 s28, s84, s86"); e("s_cselect_b32 s29, s85, s87"); e(f"s_mov_b32 s30, {640*3072}"); e("s_mov_b32 s31, 0x00020000")
    vq=VQ(); gl={}; ga={}
    if ROT:
        if ROT>=2: e("s_lshr_b32 s11, s15, 3"); e("s_mul_i32 s11, s11, 5"); e("s_add_u32 s11, s11, s14")
        else: e("s_mov_b32 s11, s14")
        for _ in range(2): e("s_sub_u32 s10, s11, 10"); e("s_cmp_lt_u32 s11, 10"); e("s_cselect_b32 s11, s11, s10")
        e("s_lshl_b32 s10, s11, 1"); e("s_lshl_b32 s11, s11, 7")
    else: e("s_mov_b32 s10, 0"); e("s_mov_b32 s11, 0")
    cur={}
    def setm(sb,imm):
        if cur.get('m0')!=(sb,imm): e(f"s_add_u32 m0, s{sb}, {imm}"); cur['m0']=(sb,imm); return True
    def sets(r,imm):
        if cur.get(r)!=imm: e(f"s_mov_b32 s{r}, {imm}"); cur[r]=imm; return True
    def G(s):
        sl=s%N1
        def dq():
            setm(51,sl*8192); e("s_mov_b64 exec, s[44:45]")
            for j in range(2): e(f"buffer_load_dwordx4 v{DQ+j}, s[24:27], s48 offen offset:{1024*j} lds"); gl[s]=vq.issue()
            e("s_mov_b64 exec, -1")
        def dg(j):
            a=setm(52,sl*12288)
            if j==0:
                e("s_mul_i32 s49, s10, 98304"); e("s_mul_i32 s48, s10, 122880"); e("s_add_u32 s10, s10, 1"); e("s_cmp_eq_u32 s10, 20"); e("s_cselect_b32 s10, 0, s10")
            elif a: e("s_nop 0")
            e(f"buffer_load_dwordx4 v{DG+j}, s[28:31], s49 offen offset:{1024*j} lds"); gl[s]=vq.issue()
        return [lambda j=j:dg(j) for j in range(3)]+[dq]
    def GA(kk):
        sl=kk%3
        def da(j):
            a=setm(53,sl*AST)
            if j==0:
                e("s_mov_b32 s72, s11"); e("s_add_u32 s11, s11, 128"); e("s_cmp_eq_u32 s11, 1280"); e("s_cselect_b32 s11, 0, s11")
            elif a: e("s_nop 0")
            e(f"buffer_load_dwordx4 v{DA+j}, s[20:23], s72 offen offset:{1024*j} lds"); ga[kk]=vq.issue()
        def dh():
            setm(50,sl*AST); e("s_mov_b64 exec, s[46:47]")
            e(f"buffer_load_dwordx4 v{DH}, s[20:23], s72 offen lds"); ga[kk]=vq.issue(); e("s_mov_b64 exec, -1")
        return [lambda j=j:da(j) for j in range(4)]+[dh]
    PRO=int(os.environ.get('PRO','1'))
    if PRO:
        for f in GA(0)+G(0)+G(1): f()
    else:
        for s in range(N1-1):
            for f in GA(s): f()
            for f in G(s): f()
    if TOUCH:
        e(f"buffer_load_dword v{JK}, v75, s[28:31], 0 offen"); vq.issue(); e(f"buffer_load_dword v{JK}, v76, s[24:27], 0 offen"); vq.issue()
        for j in range(4): e(f"buffer_load_dword v{JK}, v77, s[20:23], 0 offen offset:{256*(j+1)}"); vq.issue()
    srd(64,12,16384,WS_CNT)
    e("s_or_b32 s96, s96, 1")
    e("s_cmp_eq_u32 s2, 255"); e("s_cselect_b32 s98, 1, 0")
    e("s_cselect_b32 s92, -1, 1"); e("s_cselect_b32 s93, -1, 0"); e("s_cselect_b32 s94, 1024, 0"); e("s_cselect_b32 s95, 2048, 0")
    for i in range(4): e(f"v_mov_b32 v{HN+i}, 0")
    e("s_lshl_b32 s17, s2, 4"); e("s_add_u32 s17, s17, 8192"); e("s_mul_i32 s18, s16, 3072")
    e("v_lshlrev_b32 v70, 4, v4"); e("v_add_u32 v71, s18, v70"); e("v_mov_b32 v72, s17"); e("s_cmp_eq_u32 s2, 255"); e("s_cselect_b64 vcc, -1, 0"); e("s_nop 1")
    e("v_cndmask_b32 v73, v72, v71, vcc")
    e("s_mov_b64 exec, s[92:93]")
    for so in ("0","s94","s95"): e(f"buffer_store_dwordx4 v[{HN}:{HN+3}], v73, s[64:67], {so} offen sc1"); vq.issue()
    e("s_mov_b64 exec, -1")
    e("v_lshl_add_u32 v71, v3, 10, v70"); e("v_add_u32 v71, 8192, v71"); e("v_add_u32 v73, 4096, v72"); e(f"v_cndmask_b32 v{HL}, v73, v71, vcc")
    e("v_add_u32 v71, 4096, v71"); e(f"v_cndmask_b32 v{HS}, v72, v71, vcc")
    e("v_and_b32 v70, 31, v0"); e("v_lshrrev_b32 v71, 5, v0")
    e("v_and_b32 v72, 3, v70"); e("v_bfe_u32 v73, v70, 3, 1"); e("v_lshl_add_u32 v72, v73, 2, v72"); e("v_xor_b32 v72, 7, v72")
    e("v_lshlrev_b32 v73, 8, v70"); e("v_lshl_add_u32 v73, v72, 5, v73"); e("v_lshl_add_u32 v73, v71, 13, v73"); e("v_add_u32 v73, 16, v73")
    e("v_subrev_u32 v70, 128, v0"); e("v_lshrrev_b32 v71, 3, v70"); e("v_and_b32 v70, 7, v70"); e(f"v_mul_u32_u24 v71, {AST}, v71"); e("v_lshl_add_u32 v71, v70, 4, v71"); e(f"v_add_u32 v71, {AB+16384}, v71")
    e("v_cmp_gt_u32 vcc, 128, v0"); e("s_nop 1"); e("v_cndmask_b32 v73, v71, v73, vcc")
    for i in range(4): e(f"v_mov_b32 v{74+i}, 0x3f803f80")
    e("v_cmp_gt_u32 vcc, 152, v0"); e("s_nop 1"); e("s_mov_b64 exec, vcc"); e("ds_write_b128 v73, v[74:77]"); e("s_mov_b64 exec, -1")
    e("s_cmp_lg_u32 s16, 0"); e("s_cbranch_scc1 k1_nn"); e(f"v_mov_b32 v70, {NON}"); e("v_mov_b32 v71, s96"); e("ds_write_b32 v70, v71"); lab("k1_nn")
    e("v_and_b32 v78, 1, v3"); e("v_lshrrev_b32 v79, 1, v3")
    e("v_lshrrev_b32 v70, 2, v1"); e("v_lshl_add_u32 v71, v2, 3, v70")
    e("v_and_b32 v72, 1, v2"); e("v_lshl_add_u32 v73, v72, 2, v70")
    e("v_and_b32 v74, 3, v1"); e("v_lshlrev_b32 v74, 3, v74"); e("v_lshl_add_u32 v75, v71, 8, v74")
    for t in range(4): e(f"v_lshl_add_u32 v76, v79, 2, {t}"); e("v_xor_b32 v76, v76, v73"); e(f"v_lshl_add_u32 v{RQ+t}, v76, 5, v75")
    for j in range(2):
        e(f"v_lshl_add_u32 v76, v3, 1, {j}"); e("v_xor_b32 v76, v76, v73"); e(f"v_lshl_add_u32 v{RH+j}, v76, 5, v75")
    e("v_mul_u32_u24 v75, 192, v71"); e("v_add_u32 v75, v75, v74"); e(f"v_add_u32 v75, {GB}, v75")
    e("v_mul_u32_u24 v77, 6144, v79")
    for j in range(3):
        e("v_mul_u32_u24 v76, 3, v79"); e(f"v_add_u32 v76, {j}, v76"); e("v_xor_b32 v76, v76, v72"); e(f"v_lshl_add_u32 v{RG+j}, v76, 5, v75")
        e("v_mul_u32_u24 v76, 3, v78"); e(f"v_add_u32 v76, {j}, v76"); e("v_xor_b32 v76, v76, v72"); e("v_lshl_add_u32 v76, v76, 5, v75"); e(f"v_add_u32 v{RH+2+j}, v76, v77")
    e("v_lshrrev_b32 v70, 1, v1"); e("v_xor_b32 v70, v70, v2"); e("v_lshlrev_b32 v71, 7, v1"); e("v_lshl_add_u32 v71, v70, 4, v71")
    e(f"v_add_u32 v{RA+4}, {AB+16384}, v71"); e(f"v_xor_b32 v{RA+5}, 64, v{RA+4}")
    e("v_lshl_add_u32 v71, v78, 13, v71"); e(f"v_add_u32 v71, {AB}, v71")
    e(f"v_lshl_add_u32 v{RA}, v79, 12, v71"); e(f"v_xor_b32 v{RA+1}, 64, v{RA}"); e(f"v_xor_b32 v{RA+2}, 0x1000, v{RA}"); e(f"v_xor_b32 v{RA+3}, 64, v{RA+2}")
    if PRO==1:
        for f in GA(1)+G(2)+GA(2): f()
    srd(36,12,2048*1280,WS_O); srd(40,12,2048*3072,WS_H); srd(68,12,8*68*5120,WS_W2); srd(76,90,2048*1280)
    e("s_and_b32 s80, s2, 7"); e("s_lshl_b32 s80, s80, 2"); e("s_bfe_u32 s81, s2, 0x20003"); e("s_add_u32 s80, s80, s81"); e("s_lshr_b32 s81, s2, 5")
    e("s_mul_i32 s82, s81, 348160")
    e(f"v_lshlrev_b32 v{K2R}, 4, v4"); e(f"v_mul_u32_u24 v{K2D}, 5120, v3"); e(f"v_add_u32 v{K2D}, v{K2D}, v{K2R}"); e(f"v_add_u32 v{K2D}, s82, v{K2D}")
    e("v_lshlrev_b32 v80, 1, v79"); e("v_lshl_add_u32 v80, v78, 2, v80"); e("v_xor_b32 v81, 2, v80")
    for h in range(2):
        e(f"v_lshl_add_u32 v70, v{80+h}, 4, v1"); e("v_add_u32 v70, 16, v70"); e(f"v_mul_u32_u24 v70, {AS}, v70"); e("v_lshl_add_u32 v70, v2, 4, v70"); e("v_lshl_add_u32 v70, v79, 8, v70"); e(f"v_add_u32 v{PUT+h}, {XB}, v70")
    e(f"v_mul_u32_u24 v70, {AS}, v1"); e("v_lshl_add_u32 v70, v2, 4, v70"); e(f"v_add_u32 v70, {XB}, v70"); e(f"v_lshl_add_u32 v{PUT+2}, v3, 7, v70")
    e("s_lshl_b32 s17, s14, 3"); e("s_mul_i32 s17, s17, 49152"); e("s_mul_i32 s18, s15, 3072"); e("s_add_u32 s17, s17, s18")
    e("v_lshrrev_b32 v70, 1, v2"); e("v_lshlrev_b32 v70, 8, v70"); e("v_lshl_add_u32 v70, v1, 4, v70"); e("v_and_b32 v71, 1, v2"); e("v_lshl_add_u32 v70, v71, 3, v70"); e("v_add_u32 v70, s17, v70"); e("v_mul_u32_u24 v71, 1536, v79"); e("v_add_u32 v70, v70, v71")
    for h in range(2):
        e(f"v_mul_u32_u24 v71, 49152, v{80+h}"); e(f"v_add_u32 v{HST+2*h}, v70, v71"); e(f"v_add_u32 v{HST+2*h+1}, 49152, v{HST+2*h}")
    e("s_mov_b32 s54, 0xbfb8aa3b"); e("s_mov_b32 s55, 0xbfb8aa3b"); e("s_mov_b32 s56, 1.0"); e("s_mov_b32 s57, 1.0"); e("s_mov_b32 s58, 0xffff0000")
    e("v_and_b32 v70, 127, v0"); e("v_lshrrev_b32 v71, 7, v0")
    e(f"v_add_u32 v{AQ}, 16, v70"); e(f"v_mul_u32_u24 v{AQ}, {AS}, v{AQ}"); e("v_mul_u32_u24 v72, 80, v71"); e(f"v_add_u32 v{AQ}, v{AQ}, v72"); e(f"v_add_u32 v{AQ}, {XB}, v{AQ}")
    e(f"v_add_u32 v{AK}, {-14*AS}, v{AQ}")
    e("s_lshl_b32 s17, s14, 7"); e(f"v_add_u32 v{AR}, s17, v70")
    e(f"v_lshrrev_b32 v73, 4, v{AR}"); e("v_mul_u32_u24 v73, 20480, v73"); e(f"v_and_b32 v72, 15, v{AR}"); e("v_lshl_add_u32 v73, v72, 4, v73")
    e("v_mul_u32_u24 v72, 20, v71"); e("s_mul_i32 s18, s15, 40"); e("v_add_u32 v72, s18, v72")
    for c in range(5):
        e(f"v_add_u32 v74, {4*c}, v72"); e("v_lshrrev_b32 v70, 5, v74"); e(f"v_lshl_add_u32 v{OA+c}, v70, 10, v73"); e("v_bfe_u32 v70, v74, 3, 2"); e(f"v_lshl_add_u32 v{OA+c}, v70, 8, v{OA+c}"); e("v_bfe_u32 v70, v74, 2, 1"); e(f"v_lshl_add_u32 v{OA+c}, v70, 3, v{OA+c}")
    e("s_lshl_b32 s17, s14, 7"); e(f"v_mov_b32 v{CO}, s17"); e("s_lshr_b32 s17, s80, 1"); e("s_lshl_b32 s17, s17, 7"); e(f"v_mov_b32 v{CW}, s17"); e(f"v_mov_b32 v{C1}, 1")
    e("s_lshl_b32 s17, s81, 7"); e("s_add_u32 s17, s17, 4096"); e(f"v_mov_b32 v{W2P}, s17")
    e("s_lshl_b32 s60, s16, 8"); e("s_add_u32 s60, s60, s2"); e("s_mul_hi_u32 s61, s60, 63161284"); e("s_mul_i32 s62, s61, 68"); e("s_sub_u32 s62, s60, s62")
    e("s_sub_u32 s63, s62, 20"); e("s_cmp_lt_u32 s62, 20")
    e("s_cselect_b32 s32, s8, s88"); e("s_cselect_b32 s33, s9, s89"); e(f"s_mov_b32 s34, {1536*1280}"); e(f"s_cselect_b32 s34, {640*1280}, s34"); e("s_mov_b32 s35, 0x00020000")
    e("s_cselect_b32 s63, s62, s63"); e("s_mul_i32 s83, s63, 40960"); e("s_lshl_b32 s62, s61, 7"); e("s_add_u32 s62, s62, 4096"); e("s_mul_i32 s61, s61, 160"); e("s_add_u32 s83, s83, s61")
    e("s_cmp_lt_u32 s60, 544"); e("s_cselect_b32 s83, s83, 0x7f000000"); e("s_cselect_b32 s62, s62, 0x7f000000"); e(f"v_mov_b32 v{WC}, s62")
    e(f"s_mul_i32 s59, s16, 5120"); e(f"s_add_u32 s59, s59, {W2S}")
    for j in range(5):
        e(f"v_add_u32 v70, {64*j}, v4"); e("v_mul_u32_u24 v71, 0x199a, v70"); e("v_lshrrev_b32 v71, 16, v71"); e("v_mul_u32_u24 v72, 10, v71"); e("v_sub_u32 v72, v70, v72")
        e("v_mul_u32_u24 v71, 1280, v71"); e(f"v_lshl_add_u32 v{WA+j}, v72, 4, v71")
    e("v_lshrrev_b32 v70, 2, v1"); e("v_lshl_add_u32 v70, v2, 3, v70"); e("v_mul_u32_u24 v70, 160, v70"); e("v_and_b32 v71, 3, v1"); e("v_lshl_add_u32 v70, v71, 3, v70"); e(f"v_add_u32 v{WR}, s59, v70")
    e("s_mul_i32 s60, s60, 5120"); e(f"v_add_u32 v{WST}, s60, v{K2R}"); e("s_movk_i32 s99, 4096")
    e("v_readfirstlane_b32 s73, v80"); e("v_readfirstlane_b32 s74, v81")
    stamp()
    q=LQ(); fr={}; hf={}; af={}
    def rd(s,t):
        sl=s%N1; r=4*((10*s+t)%8)
        if t<4: a,o,d=RQ+t,sl*8192,1024
        else:
            f,j=(t-4)//3,(t-4)%3; a,o,d=RG+j,sl*12288+f*6144,768
        e(f"ds_read_b64_tr_b16 a[{r}:{r+1}], v{a} offset:{o}"); q.issue()
        e(f"ds_read_b64_tr_b16 a[{r+2}:{r+3}], v{a} offset:{o+d}"); fr[(s,t)]=q.issue()
    def rdh(s,j):
        sl=s%N1; r=HF+4*j
        o,d=(sl*8192,1024) if j<2 else (sl*12288,768)
        e(f"ds_read_b64_tr_b16 a[{r}:{r+1}], v{RH+j} offset:{o}"); q.issue()
        e(f"ds_read_b64_tr_b16 a[{r+2}:{r+3}], v{RH+j} offset:{o+d}"); hf[(s,j)]=q.issue()
    def rda(s,i):
        r=AF+20*(s%2)+4*i; o=((s//2)%3)*AST
        e(f"ds_read_b128 a[{r}:{r+3}], v{RA+(s&1)+2*(i>>1)} offset:{o+(2048 if i&1 else 0)}"); af[(s,i)]=q.issue()
    side={}; sw={}
    def wl(j):
        setm(59,1024*j); e("s_nop 0"); e(f"buffer_load_dwordx4 v{WA+j}, s[32:35], s83 offen lds"); sw['l']=vq.issue()
    def tr(j):
        vq.wait(sw['l']); e(f"ds_read_b64_tr_b16 v[{WD+4*j}:{WD+1+4*j}], v{WR} offset:{32*j}"); q.issue(); e(f"ds_read_b64_tr_b16 v[{WD+2+4*j}:{WD+3+4*j}], v{WR} offset:{32*j+640}"); sw['r']=q.issue()
    def wst(j):
        q.wait(sw['r'])
        e(f"buffer_store_dwordx4 v[{WD+4*j}:{WD+3+4*j}], v{WST}, s[68:71], 0 offen offset:{1024*j} sc1" if j<4 else f"buffer_store_dwordx4 v[{WD+4*j}:{WD+3+4*j}], v{WST}, s[68:71], s99 offen sc1"); sw['s']=vq.issue()
    def hload():
        e("s_mov_b64 exec, s[92:93]"); e(f"buffer_load_dwordx4 v[{HD}:{HD+3}], v{HL}, s[64:67], 0 offen sc1"); sw['h']=vq.issue(); e("s_mov_b64 exec, -1")
    _hc=[0]
    def hsend():
        e("s_mov_b64 exec, s[92:93]"); e(f"buffer_store_dwordx4 v[{HN}:{HN+3}], v{HS}, s[64:67], 0 offen sc1"); vq.issue(); e("s_mov_b64 exec, -1")
    def hstore():
        vq.wait(sw['h']); n=_hc[0]; _hc[0]+=1
        e("s_cmp_eq_u32 s98, 0"); e(f"s_cbranch_scc1 k1_hs{n}")
        for i in range(4): e(f"v_mov_b32 v{HN+i}, v{HD+i}")
        lab(f"k1_hs{n}")
        hsend()
    def hcheck():
        vq.wait(sw['h'])
        e("s_mov_b32 s61, 0"); e("s_cmp_eq_u32 s98, 0"); e("s_cbranch_scc1 k1_hn")
        lab("k1_hl")
        e(f"buffer_store_dwordx4 v[{HD}:{HD+3}], v{HS}, s[64:67], 0 offen sc1")
        e("v_cmp_ne_u32 vcc, 0xff, v0"); e("s_nop 1"); e("s_mov_b64 s[62:63], vcc"); e(f"v_cmp_eq_u32 vcc, 0, v{HD}"); e("s_nop 1"); e("s_and_b64 vcc, vcc, s[62:63]"); e("s_cbranch_vccz k1_hd")
        e(f"buffer_load_dwordx4 v[{HD}:{HD+3}], v{HL}, s[64:67], 0 offen sc1"); e("s_waitcnt vmcnt(0)")
        e("s_add_u32 s61, s61, 1"); e("s_cmp_lt_u32 s61, 50000"); e("s_cbranch_scc1 k1_hl"); e("s_branch k1_hd")
        lab("k1_hn")
        e(f"v_readfirstlane_b32 s60, v{HD}"); e("s_cmp_eq_u32 s60, s96"); e("s_cbranch_scc1 k1_hd")
        e("s_mov_b64 exec, 1")
        e(f"buffer_store_dwordx4 v[{HN}:{HN+3}], v{HS}, s[64:67], 0 offen sc1"); e(f"buffer_load_dwordx4 v[{HD}:{HD+3}], v{HL}, s[64:67], 0 offen sc1"); e("s_waitcnt vmcnt(0)")
        e("s_mov_b64 exec, -1")
        e("s_add_u32 s61, s61, 1"); e("s_cmp_lt_u32 s61, 50000"); e("s_cbranch_scc1 k1_hn")
        lab("k1_hd")
    def sg():
        vq.wait(sw['s']); hcheck()
        e("s_mov_b64 exec, 1"); e(f"buffer_atomic_add v{C1}, v{WC}, s[64:67], 0 offen"); vq.issue(); e("s_mov_b64 exec, -1")
    def pw(): e(f"buffer_load_dword v{PL}, v{W2P}, s[64:67], 0 offen sc1"); sw['p']=vq.issue()
    side[1]=[lambda j=j:wl(j) for j in range(5)]
    side[6]=[lambda j=j:tr(j) for j in range(5)]; side[7]=[lambda j=j:wst(j) for j in range(5)]; side[14]=[sg]; side[19]=[pw]
    side[2]=[hsend]
    for r in (3,6,9,12): side.setdefault(r,[]).insert(0,hload)
    for r in (5,8,11): side.setdefault(r,[]).append(hstore)
    vq.wait(gl[0]); e("s_waitcnt lgkmcnt(0)"); e("s_barrier")
    e(f"v_mov_b32 v70, {NON}"); e("ds_read_b32 v71, v70")
    for i in range(5): rda(0,i)
    for t in range(PD): rd(0,t)
    e(f"s_waitcnt lgkmcnt({min(15,q.n)})"); e("v_readfirstlane_b32 s96, v71")
    e("s_cmp_eq_u32 s98, 0"); e("s_cselect_b32 s17, s96, 0")
    for i in range(4): e(f"v_mov_b32 v{HN+i}, s17")
    hsend()
    HP={3:0,7:1,11:2,15:3,19:4}
    HR={0:0,4:1,8:2,12:3,16:4}
    SP={1:0,5:1,9:4}
    for s in range(20):
        sl=s%N1; ab=AF+20*(s%2)
        if s<19:
            vq.wait(gl[s+1])
            if s%2==1: vq.wait(ga[(s+1)//2])
            e("s_barrier")
        if s==0: stamp()
        g=G(s+N1-1) if s+N1-1<20 else []
        if PRO==2 and s==0: g=G(2)+GA(1)+g
        if PRO==2 and s==1: g=GA(2)+g
        if EXP&1: g=[]; gl[s+N1-1]=0
        if s%2==1 and (s-1)//2+3<10:
            if EXP&2: ga[(s-1)//2+3]=0
            else: g=g+GA((s-1)//2+3)
        for t2 in range(20):
            t=t2>>1
            if t2%2==0:
                f=t+PD
                if f<10: rd(s,f)
                elif s<19: rd(s+1,f-10)
            if t2 in HR: rdh(s,HR[t2])
            if s<19 and t2 in (9,11,13,15,17): rda(s+1,(t2-9)//2)
            if t2==0: q.wait(af[(s,4)])
            q.wait(fr[(s,t)])
            r=4*((10*s+t)%8)
            for i in range(2*(t2&1),2*(t2&1)+2):
                a=AC+16*t+4*i
                if EXP&4 and s: continue
                e(f"v_mfma_f32_16x16x32_bf16 v[{a}:{a+3}], a[{r}:{r+3}], a[{ab+4*i}:{ab+4*i+3}], "+(f"v[{a}:{a+3}]" if s else "0"))
            if t2 in HP:
                j=HP[t2]; q.wait(hf[(s,j)]); a=HC+4*j
                e(f"v_mfma_f32_16x16x32_bf16 a[{a}:{a+3}], a[{HF+4*j}:{HF+4*j+3}], a[{ab+16}:{ab+19}], "+(f"a[{a}:{a+3}]" if s else "0"))
            if t2 in SP:
                i=SP[t2]; a=SQ+4*min(i,2)
                e(f"v_mfma_f32_16x16x32_bf16 a[{a}:{a+3}], a[{ab+4*i}:{ab+4*i+3}], a[{ab+4*i}:{ab+4*i+3}], "+(f"a[{a}:{a+3}]" if s else "0"))
            if (t2%2==1 or len(g)>10-t2//2) and g: g.pop(0)()
            if t2%2==0 and side.get(s): side[s].pop(0)()
        assert not g and not side.get(s)
    e("s_nop 15"); stamp()
    e("s_lshl_b32 s17, s73, 6"); e(f"s_add_u32 s17, s17, {STB+64}"); e("v_lshlrev_b32 v7, 2, v1"); e("v_add_u32 v5, s17, v7")
    e("s_lshl_b32 s17, s74, 6"); e(f"s_add_u32 s17, s17, {STB+64}"); e("v_add_u32 v6, s17, v7")
    e(f"v_add_u32 v7, {STB}, v7"); e("v_lshl_add_u32 v8, v3, 6, v7")
    e("v_lshlrev_b32 v13, 4, v2"); e(f"v_add_u32 v13, {ST_CS}, v13"); e("v_lshl_add_u32 v9, v3, 7, v13"); e("v_mul_u32_u24 v10, 192, v3"); e("v_add_u32 v10, v10, v13"); e("v_add_u32 v10, 512, v10")
    e("v_lshrrev_b32 v14, 1, v3"); e("v_lshl_add_u32 v11, v14, 8, v13"); e("v_mul_u32_u24 v12, 192, v14"); e("v_add_u32 v12, v12, v13"); e("v_add_u32 v12, 512, v12")
    e("v_mul_u32_u24 v14, 640, v14"); e("v_add_u32 v15, v14, v5"); e("v_add_u32 v16, v14, v6")
    for r in range(4):
        e(f"s_mov_b32 exec_lo, {0x00100001<<r}"); e(f"s_mov_b32 exec_hi, {0x10000100<<r}")
        e(f"ds_write_b32 v5, a{SQ+r}"); e(f"ds_write_b32 v5, a{SQ+4+r} offset:64"); e(f"ds_write_b32 v7, a{SQ+8+r}")
    e("s_mov_b32 exec_lo, 0"); e("s_mov_b32 exec_hi, 0xffff")
    for i in range(4): e(f"ds_write_b32 v{15+(i>>1)}, v{AC+48+4*i} offset:{ST_SUM-STB+64*(i&1)}")
    e(f"ds_write_b32 v8, a{HC+4} offset:{ST_SUMH-STB}")
    e("s_mov_b32 exec_lo, 0x00010001"); e("s_mov_b32 exec_hi, 0x00010001")
    for j in range(5): e(f"ds_write_b128 v{9 if j<2 else 10}, a[{HC+4*j}:{HC+4*j+3}] offset:{64*(j if j<2 else j-2)}")
    e("s_mov_b64 exec, -1")
    vq.wait(sw['p'])
    if os.environ.get('ST2'): stamp()
    e(f"v_readfirstlane_b32 s60, v{PL}"); e("s_cmp_ge_u32 s60, 68"); e("s_cbranch_scc1 k1_w_d"); e("s_mov_b32 s61, 0")
    lab("k1_w_s")
    e(f"buffer_load_dword v{PL}, v{W2P}, s[64:67], 0 offen sc1"); e("s_waitcnt vmcnt(0)"); e(f"v_readfirstlane_b32 s60, v{PL}")
    e("s_add_u32 s61, s61, 1"); e("s_cmp_ge_u32 s60, 68"); e("s_cbranch_scc1 k1_w_d"); e("s_cmp_lt_u32 s61, 50000"); e("s_cbranch_scc1 k1_w_s")
    lab("k1_w_d")
    e("s_waitcnt lgkmcnt(0)"); e("s_barrier")
    if os.environ.get('ST2'): stamp()
    VB2=WST; b2={}; a2={}
    ROT2=int(os.environ.get('ROT2','1'))
    e("s_mul_i32 s10, s81, 3"); e("s_lshr_b32 s10, s10, 1"); e("s_mul_i32 s11, s81, 5"); e("s_lshr_b32 s11, s11, 3")
    def rot2(d,u,mul,add):
        n,r,i=(12,10,u) if u<12 else (5,11,u-12)
        e(f"s_add_u32 s{d}, s{r}, {i}"); e(f"s_sub_u32 s3, s{d}, {n}"); e(f"s_cmp_lt_u32 s{d}, {n}"); e(f"s_cselect_b32 s{d}, s{d}, s3"); e(f"s_mul_i32 s{d}, s{d}, {mul}")
        if add: e(f"s_add_u32 s{d}, s{d}, {add}")
    e(f"v_add_u32 v{VB2}, 4096, v{K2D}")
    def B2(u):
        kb=20+4*u if u<12 else 4*(u-12); base=20*(u if u<12 else u-12)
        def ld(t):
            if t==0:
                if ROT2: rot2(48,u,20480,(kb-4*(u if u<12 else u-12))*5120)
                else: e(f"s_mov_b32 s48, {kb*5120}")
            e(f"buffer_load_dwordx4 a[{base+4*t}:{base+4*t+3}], v{K2D if t<4 else VB2}, s[68:71], s48 offen offset:{1024*(t&3)}"); b2[u]=vq.issue()
        return [lambda t=t:ld(t) for t in range(5)]
    VAH=6; VAO=10; VO=14; PW=15; PR=18; AR0=168; ACH=88; ACO=100
    ASL=[168,184,200,216,232,56,72]
    def A2(u,bias=None):
        def al(j):
            if j==0:
                o=4096*(u if u<12 else u-12)
                if ROT2:
                    rot2(49,u,4096,0)
                    if bias is not None: e(f"s_or_b32 s49, s{bias}, s49")
                else: e(f"s_mov_b32 s49, {o}" if bias is None else f"s_or_b32 s49, s{bias}, {o}")
            a=ASL[u%7]+4*j
            e(f"buffer_load_dwordx4 v[{a}:{a+3}], v{(VAH if u<12 else VAO)+j}, s[{40 if u<12 else 36}:{43 if u<12 else 39}], s49 offen"); a2[u]=vq.issue()
        return [lambda j=j:al(j) for j in range(4)]
    NM=18; RI=24
    for i in range(4): e(f"ds_read_b32 v{NM+i}, v{5+(i>>1)} offset:{ST_SUM-STB+640+64*(i&1)}")
    e(f"ds_read_b32 v{NM+4}, v7 offset:{ST_SUMH-STB+192}")
    for i in range(4): e(f"ds_read_b32 v{RI+i}, v{5+(i>>1)} offset:{64*(i&1)}")
    e(f"ds_read_b32 v{RI+4}, v7")
    CSR=52
    q=LQ(); cs={}
    for _ in range(10): q.issue()
    ORD=[4,7,5,8,6,9,0,1,2,3]
    def rcs(n):
        t=ORD[n]; r=CSR+4*(n%4)
        if t<4: e(f"ds_read_b128 v[{r}:{r+3}], v11 offset:{64*t}")
        else: e(f"ds_read_b128 v[{r}:{r+3}], v12 offset:{64*((t-4)%3)+384*((t-4)//3)}")
        cs[t]=q.issue()
    for j in range(2): e(f"ds_read_b128 v[{84-4*j}:{87-4*j}], v9 offset:{64*j}"); cs[('h',j)]=q.issue()
    for n in range(3): rcs(n)
    for u in range(2):
        for f in B2(u): f()
    q.wait(10)
    for i in range(5):
        m,v=NM+i,RI+i
        e(f"v_mul_f32 v{m}, 0x3acccccd, v{m}"); e(f"v_mul_f32 v{v}, 0x3acccccd, v{v}")
        e(f"v_fma_f32 v{v}, -v{m}, v{m}, v{v}"); e(f"v_max_f32 v{v}, 0, v{v}"); rnd(m,14); rnd(v,14)
        e(f"v_add_f32 v{v}, 0x3727c5ac, v{v}"); rnd(v,14); e(f"v_sqrt_f32 v{v}, v{v}"); e("s_nop 0"); rnd(v,14); e(f"v_rcp_f32 v{v}, v{v}"); e(f"v_sub_f32 v{m}, 0, v{m}")
    e("s_nop 0")
    def norm(a,c,i):
        p=i&~1; sl="op_sel:[0,0,0] op_sel_hi:[1,0,1]" if i%2==0 else "op_sel:[0,1,0] op_sel_hi:[1,1,1]"
        s2="op_sel:[0,0] op_sel_hi:[1,0]" if i%2==0 else "op_sel:[0,1] op_sel_hi:[1,1]"
        for k in (0,2): e(f"v_pk_fma_f32 v[{a+k}:{a+k+1}], v[{c+k}:{c+k+1}], v[{NM+p}:{NM+1+p}], v[{a+k}:{a+k+1}] {sl}")
        for k in (0,2): e(f"v_pk_mul_f32 v[{a+k}:{a+k+1}], v[{a+k}:{a+k+1}], v[{RI+p}:{RI+1+p}] {s2}")
    def put(a, addr, off):
        rnd2(a,a+1,13); rnd2(a+2,a+3,17)
        e(f"ds_write_b128 v{addr}, v[{a}:{a+3}] offset:{off}"); q.issue()
    for j in range(2):
        for k in range(4): e(f"v_accvgpr_read_b32 v{76+k}, a{HC+4*j+k}")
        q.wait(cs[('h',j)]); norm(76,84-4*j,4); put(76,PUT+2,64*j)
    SPR['q']=[f for u in range(2,12) for f in B2(u)]; SPR['per']=int(os.environ.get('PER','14')); SPR['on']=True
    def signal(off):
        e("s_mov_b64 exec, 1"); e(f"buffer_atomic_add v{C1}, v{CO}, s[64:67], 0 offen offset:{off}"); vq.issue(); e("s_mov_b64 exec, -1")
    def poll(off):
        e(f"buffer_load_dword v{PL}, v{CW}, s[64:67], 0 offen offset:{off} sc1"); return vq.issue()
    def spin(off,nm):
        e("s_mov_b32 s61, 0")
        lab(f"{nm}_s")
        e(f"buffer_load_dword v{PL}, v{CW}, s[64:67], 0 offen offset:{off} sc1"); e("s_waitcnt vmcnt(0)"); e(f"v_readfirstlane_b32 s60, v{PL}")
        e("s_add_u32 s61, s61, 1"); e("s_cmp_ge_u32 s60, 64"); e(f"s_cbranch_scc1 {nm}_e"); e("s_cmp_lt_u32 s61, 50000"); e(f"s_cbranch_scc1 {nm}_s")
        lab(f"{nm}_e")
    hn=0
    for n in range(10):
        t=ORD[n]
        q.wait(cs[t])
        for i in range(4): norm(AC+16*t+4*i,CSR+4*(n%4),i)
        if n+3<10: rcs(n+3)
        if t<4:
            for i in range(4): put(AC+16*t+4*i,PUT+(i>>1),16*AS*(i&1)+64*t)
        if t>=7:
            j=t-7
            for i in range(4):
                Gt=AC+16*(4+j)+4*i; U=AC+16*(7+j)+4*i; T=68+8*(hn%2); hn+=1
                for k,R in enumerate((Gt,Gt+2,U,U+2)): e(f"v_cvt_pk_bf16_f32 v{T+k}, v{R}, v{R+1}")
                for k,R in enumerate((Gt,Gt+2,U,U+2)): e(f"v_lshlrev_b32 v{R}, 16, v{T+k}"); e(f"v_and_b32 v{R+1}, s58, v{T+k}")
                for k in (0,2): e(f"v_pk_mul_f32 v[{T+k}:{T+k+1}], v[{Gt+k}:{Gt+k+1}], s[54:55]")
                for k in range(4): e(f"v_exp_f32 v{T+k}, v{T+k}")
                for k in (0,2): e(f"v_pk_add_f32 v[{T+k}:{T+k+1}], v[{T+k}:{T+k+1}], s[56:57]")
                for k in range(4): e(f"v_rcp_f32 v{T+k}, v{T+k}")
                for k in (0,2): e(f"v_pk_mul_f32 v[{Gt+k}:{Gt+k+1}], v[{Gt+k}:{Gt+k+1}], v[{T+k}:{T+k+1}]")
                for k in (0,2): e(f"v_cvt_pk_bf16_f32 v{T+4+k}, v{Gt+k}, v{Gt+k+1}")
                for k in (0,2): e(f"v_lshlrev_b32 v{Gt+k}, 16, v{T+4+k}"); e(f"v_and_b32 v{Gt+k+1}, s58, v{T+4+k}")
                for k in (0,2): e(f"v_pk_mul_f32 v[{Gt+k}:{Gt+k+1}], v[{Gt+k}:{Gt+k+1}], v[{U+k}:{U+k+1}]")
                e(f"v_cvt_pk_bf16_f32 v{T+6}, v{Gt}, v{Gt+1}"); e(f"v_cvt_pk_bf16_f32 v{T+7}, v{Gt+2}, v{Gt+3}")
                e(f"buffer_store_dwordx2 v[{T+6}:{T+7}], v{HST+i}, s[40:43], 0 offen offset:{512*j}{SC}"); hst=vq.issue()
    stamp()
    e("s_lshl_b32 s17, s80, 2")
    for j in range(4):
        e(f"v_add_u32 v19, {j}, v3"); e("v_and_b32 v19, 3, v19"); e("v_add_u32 v20, s17, v19")
        e("v_lshl_add_u32 v21, v3, 10, v30")
        e(f"v_mul_u32_u24 v{VAH+j}, 49152, v20"); e(f"v_add_u32 v{VAH+j}, v{VAH+j}, v21")
        e(f"v_mul_u32_u24 v{VAO+j}, 20480, v20"); e(f"v_add_u32 v{VAO+j}, v{VAO+j}, v21")
        if j: e(f"v_mul_u32_u24 v19, 30720, v19"); e(f"v_add_u32 v19, {5120*(j-1)}, v19"); e(f"v_add_u32 v{PW+j-1}, v19, v{K2R}")
        else: e(f"v_mul_u32_u24 v19, 30720, v19"); e(f"v_add_u32 v{PR}, v19, v{K2R}")
    e("s_add_u32 s17, s17, s16")
    e("s_lshl_b32 s17, s17, 4"); e(f"v_add_u32 v{VO}, s17, v1"); e(f"v_mul_u32_u24 v{VO}, 1280, v{VO}"); e(f"v_lshl_add_u32 v{VO}, v2, 3, v{VO}"); e("s_mul_i32 s19, s81, 160"); e(f"v_add_u32 v{VO}, s19, v{VO}")
    vq.wait(hst); signal(0)
    e("s_waitcnt lgkmcnt(0)"); e("s_barrier")
    q=LQ(); kr={}
    QR=52; LG=72; TT=80; OP=72; KB=(88,108,128,148)
    for c in range(5): e(f"ds_read_b128 v[{QR+4*c}:{QR+3+4*c}], v{AQ} offset:{320+16*c}"); q.issue()
    def rk(n):
        w=n%8; o=160 if n>=8 else 0; b=KB[n%4]
        for c in range(5): e(f"ds_read_b128 v[{b+4*c}:{b+3+4*c}], v{AK} offset:{(14-2*w)*AS+o+16*c}"); kr[n]=q.issue()
    for n in range(3): rk(n)
    SIGW=int(os.environ.get('SIGW','5'))
    for w in range(8):
        rk(w+3)
        q.wait(kr[w]); K=KB[w%4]
        e(f"v_pk_mul_f32 v[{TT}:{TT+1}], v[{QR}:{QR+1}], v[{K}:{K+1}]"); e(f"v_pk_mul_f32 v[{TT+2}:{TT+3}], v[{QR+2}:{QR+3}], v[{K+2}:{K+3}]")
        for d in range(4,20,2): e(f"v_pk_fma_f32 v[{TT+(d&2)}:{TT+1+(d&2)}], v[{QR+d}:{QR+1+d}], v[{K+d}:{K+d+1}], v[{TT+(d&2)}:{TT+1+(d&2)}]")
        e(f"v_pk_add_f32 v[{TT}:{TT+1}], v[{TT}:{TT+1}], v[{TT+2}:{TT+3}]"); e(f"v_add_f32 v{LG+w}, v{TT}, v{TT+1}")
        rnd(LG+w,TT); e(f"v_mul_f32 v{LG+w}, 0x3e64f92e, v{LG+w}"); rnd(LG+w,TT)
        e(f"v_cmp_le_u32 vcc, {2*w}, v{AR}"); e(f"v_mov_b32 v{TT+1}, 0xce6e6b28"); e("s_nop 0"); e(f"v_cndmask_b32 v{LG+w}, v{TT+1}, v{LG+w}, vcc")
        if w==SIGW-3:
            SPR['on']=False
            while SPR['q']: SPR['q'].pop(0)()
            ph=poll(0)
        if w==SIGW:
            vq.wait(ph)
            e(f"v_readfirstlane_b32 s60, v{PL}"); e("s_cmp_ge_u32 s60, 64"); e("s_cselect_b32 s75, 0, 0x7f000000")
            SPR['q']=[f for u in range(5) for f in A2(u,75)]; SPR['per']=8; SPR['n']=0; SPR['on']=True
    e(f"v_max3_f32 v{TT}, v{LG}, v{LG+1}, v{LG+2}"); e(f"v_max3_f32 v{TT}, v{TT}, v{LG+3}, v{LG+4}"); e(f"v_max3_f32 v{TT}, v{TT}, v{LG+5}, v{LG+6}"); e(f"v_max_f32 v{TT}, v{TT}, v{LG+7}")
    e(f"v_mov_b32 v{TT+1}, 0")
    for w in range(8): e(f"v_sub_f32 v{LG+w}, v{LG+w}, v{TT}"); e(f"v_mul_f32 v{LG+w}, 0x3fb8aa3b, v{LG+w}")
    for w in range(8): e(f"v_exp_f32 v{LG+w}, v{LG+w}")
    e("s_nop 0")
    for w in range(8): e(f"v_add_f32 v{TT+1}, v{TT+1}, v{LG+w}")
    e(f"v_rcp_f32 v{TT+1}, v{TT+1}"); e("s_nop 0")
    for w in range(8): e(f"v_mul_f32 v{LG+w}, v{LG+w}, v{TT+1}")
    for w in range(0,8,2): rnd2(LG+w,LG+1+w,TT)
    for w in range(8):
        if w+11<16: rk(w+11)
        q.wait(kr[8+w]); V=KB[w%4]; P=LG+(w&~1); osl="op_sel:[0,0,0] op_sel_hi:[0,1,1]" if w%2==0 else "op_sel:[1,0,0] op_sel_hi:[1,1,1]"
        if w==7: e("s_barrier")
        for d in range(0,20,2):
            if w==0: e(f"v_pk_mul_f32 v[{QR+d}:{QR+1+d}], v[{P}:{P+1}], v[{V+d}:{V+d+1}] op_sel:[0,0] op_sel_hi:[0,1]")
            else: e(f"v_pk_fma_f32 v[{QR+d}:{QR+1+d}], v[{P}:{P+1}], v[{V+d}:{V+d+1}], v[{QR+d}:{QR+1+d}] {osl}")
    SPR['on']=False
    while SPR['q']: SPR['q'].pop(0)()
    for d in range(10): e(f"v_cvt_pk_bf16_f32 v{OP+d}, v{QR+2*d}, v{QR+1+2*d}")
    for c in range(5):
        e(f"buffer_store_dwordx2 v[{OP+2*c}:{OP+1+2*c}], v{OA+c}, s[36:39], 0 offen{SC}"); ost=vq.issue()
    stamp()
    e("s_cmp_eq_u32 s75, 0"); e("s_cbranch_scc1 k1_hf")
    sv=(vq.n,vq.done,dict(a2))
    e("s_waitcnt vmcnt(0)"); signal(2048)
    spin(0,"k1_h")
    for u in range(5):
        for f in A2(u): f()
    e("s_waitcnt vmcnt(16)"); e("s_branch k1_hg")
    vq.n,vq.done,a2=sv[0],sv[1],sv[2]
    lab("k1_hf")
    vq.wait(a2[0])
    lab("k1_hg")
    a2[0]=0
    for u in range(1,5): a2[u]=vq.n-16+4*u
    vq.done=vq.n-16; ost=vq.n
    assert max(v for k,v in b2.items())<=vq.done
    stamp()
    XR=20
    q=LQ(); pr={}
    R0=108
    def rdp(t,st,sl):
        r=R0+60*st+4*(t*3+sl); e(f"ds_read_b128 v[{r}:{r+3}], v{PR} offset:{15360*st+5120*sl+1024*t}"); pr[(t,st)]=q.issue()
    for u in range(17):
        g=[]
        if u==4:
            vq.wait(ost); e("s_mov_b64 exec, 1"); e(f"buffer_atomic_add v{C1}, v{CO}, s[64:67], s75 offen offset:2048"); vq.issue(); e("s_mov_b64 exec, -1")
        if u==6: g.append(lambda: b2.__setitem__('po',poll(2048)))
        if u==7+1:
            vq.wait(b2['po']); e(f"v_readfirstlane_b32 s60, v{PL}"); e("s_cmp_ge_u32 s60, 64"); e("s_cselect_b32 s75, 0, 0x7f000000")
        if u==12:
            stamp()
            e("s_cmp_eq_u32 s75, 0"); e("s_cbranch_scc1 k1_of")
            sv=(vq.n,vq.done,dict(a2))
            spin(2048,"k1_o")
            for uu in range(12,16):
                for f in A2(uu): f()
            e("s_waitcnt vmcnt(0)")
            vq.n,vq.done,a2=sv[0],sv[1],sv[2]
            lab("k1_of")
            stamp()
        if u==0: g+=A2(5)+A2(6)
        if 1<=u<=5: g+=A2(u+6)
        if 8<=u<=12: g+=A2(u+4,75 if u<12 else None)
        if 1<=u<=10:
            if u%2==1: bo=B2(12+(u-1)//2)
            g+=bo[:3] if u%2==1 else bo[3:]
        if u==13: g+=[lambda t=t: (e(f"buffer_load_dwordx2 v[{XR+2*t}:{XR+1+2*t}], v{VO}, s[20:23], 0 offen offset:{32*t}"),b2.__setitem__('x',vq.issue())) for t in range(5)]
        if u in (12,13,14):
            k0=(0,5,10)[u-12]
            g+=[lambda k=k: e(f"ds_write_b128 v{PW+k//5}, v[{ACH+20+4*k}:{ACH+20+4*k+3}] offset:{1024*(k%5)}") for k in range(k0,k0+5)]
        if u==15:
            e("s_waitcnt lgkmcnt(0)"); e("s_barrier")
        if u in (15,16): g+=[lambda k=k: rdp(k//3,0,k%3) for k in (range(8) if u==15 else range(8,15))]
        vq.wait(a2[u]); vq.wait(b2[u])
        bb=20*(u if u<12 else u-12)
        for n in range(20):
            j,t=n//5,n%5
            a=ASL[u%7]+4*j
            if u<12: c=f"v[{ACH+20*j+4*t}:{ACH+20*j+4*t+3}]"
            else: c=f"a[{ACO+20*j+4*t}:{ACO+20*j+4*t+3}]"
            e(f"v_mfma_f32_16x16x32_bf16 {c}, a[{bb+4*t}:{bb+4*t+3}], v[{a}:{a+3}], "+(c if u not in (0,12) else "0"))
            if g and n%2==1: g.pop(0)()
        assert not g
    e("s_nop 7")
    for j in (1,2,3):
        for t in range(5): e(f"ds_write_b128 v{PW+j-1}, a[{ACO+20*j+4*t}:{ACO+20*j+4*t+3}] offset:{15360+1024*t}"); q.issue()
    def psum(t,st,D):
        q.wait(pr[(t,st)])
        r=R0+60*st+12*t
        for k in (0,2): e(f"v_pk_add_f32 v[{r+k}:{r+k+1}], v[{r+k}:{r+k+1}], v[{r+4+k}:{r+5+k}]")
        for k in (0,2): e(f"v_pk_add_f32 v[{D+k}:{D+k+1}], v[{D+k}:{D+k+1}], v[{r+8+k}:{r+9+k}]")
        for k in (0,2): e(f"v_pk_add_f32 v[{D+k}:{D+k+1}], v[{D+k}:{D+k+1}], v[{r+k}:{r+k+1}]")
        rnd2(D,D+1,32); rnd2(D+2,D+3,33)
    for t in range(2): psum(t,0,ACH+4*t)
    e("s_waitcnt lgkmcnt(0)"); q.done=q.n; e("s_barrier")
    for t in range(5):
        for sl in range(3): rdp(t,1,sl)
    for t in range(2,5): psum(t,0,ACH+4*t)
    vq.wait(b2['x'])
    for t in range(5):
        for k in range(4): e(f"v_accvgpr_read_b32 v{52+4*t+k}, a{ACO+4*t+k}")
        for r in range(4):
            xr=XR+2*t+(r>>1)
            e(f"v_lshlrev_b32 v{228+4*t+r}, 16, v{xr}" if r%2==0 else f"v_and_b32 v{228+4*t+r}, 0xffff0000, v{xr}")
    for t in range(5):
        A=52+4*t; B=ACH+4*t; X=228+4*t
        psum(t,1,A)
        for r in (0,2): e(f"v_pk_add_f32 v[{A+r}:{A+r+1}], v[{A+r}:{A+r+1}], v[{X+r}:{X+r+1}]")
        rnd2(A,A+1,32); rnd2(A+2,A+3,33)
        for r in (0,2): e(f"v_pk_add_f32 v[{A+r}:{A+r+1}], v[{A+r}:{A+r+1}], v[{B+r}:{B+r+1}]")
        e(f"v_cvt_pk_bf16_f32 v{72+2*t}, v{A}, v{A+1}"); e(f"v_cvt_pk_bf16_f32 v{73+2*t}, v{A+2}, v{A+3}")
        e(f"buffer_store_dwordx2 v[{72+2*t}:{73+2*t}], v{VO}, s[76:79], 0 offen offset:{32*t}")
    stamp()
    stamp_out("k1",16)
    lab("k1_end"); e("s_endpgm")

N="parallel_sum__sliding_local_dilated__glu_gated_swiglu__prompt"
hdr=open(f"cdna_kernels/{N}.s.ref").read().split("; Override")[0]
k12()
out=hdr
out+=f"; @launch kernel=k1_kernel grid=(256,1,1) block=(256,1,1) lds={K1LDS}\n"
out+='.amdgcn_target "amdgcn-amd-amdhsa--gfx950"\n.text\n.globl k1_kernel\n.p2align 8\n'
out+="\n".join(L)+"\n.section .rodata,\"a\"\n"
out+=f""".p2align 6
.amdhsa_kernel k1_kernel
  .amdhsa_next_free_vgpr {256+(256 if STAMP else 240)}
  .amdhsa_next_free_sgpr 102
  .amdhsa_accum_offset 256
  .amdhsa_group_segment_fixed_size 0
  .amdhsa_kernarg_size 80
  .amdhsa_user_sgpr_count 2
  .amdhsa_user_sgpr_kernarg_segment_ptr 1
  .amdhsa_system_sgpr_workgroup_id_x 1
.end_amdhsa_kernel
"""
open(os.environ.get("OUT",f"e1.s"),"w").write(out)
```

```python
import os
L=[]
SPR={'q':[],'n':0,'per':16,'on':False}
def e(s):
    L.append("    "+s)
    if SPR['on'] and s.startswith("v_") and not s.startswith("v_cmp") and not s.startswith("v_readfirst"):
        SPR['n']+=1
        if SPR['n']>=SPR['per'] and SPR['q']:
            SPR['n']=0; SPR['on']=False; SPR['q'].pop(0)(); SPR['on']=True
def lab(s): L.append(s+":")
WS_O=0; WS_H=4<<20; WS_W2=28<<20; WS_CNT=31<<20
STAMP=int(os.environ.get('STAMP','0')); _st=[0]
EXP=int(os.environ.get('EXP','0'))
SA=240
def stamp():
    if not STAMP: return
    i=_st[0]; _st[0]+=1
    assert i<12
    e("s_memtime s[100:101]" if STAMP==1 else "s_memrealtime s[100:101]"); e("s_waitcnt lgkmcnt(0)"); e(f"v_accvgpr_write_b32 a{SA+i}, s100")
def stamp_out(n,wsg,wg=0):
    if not STAMP: return
    k=_st[0]; _st[0]=0
    if STAMP==2:
        e("s_load_dwordx2 s[88:89], s[0:1], 72"); e("s_waitcnt lgkmcnt(0)"); e(f"s_add_u32 s88, s88, {30<<20}"); e("s_addc_u32 s89, s89, 0"); e("s_mov_b32 s90, 65536"); e("s_mov_b32 s91, 0x00020000")
        e(f"s_lshl_b32 s94, s2, 8"); e(f"s_lshl_b32 s95, s{wsg}, 6"); e("s_add_u32 s94, s94, s95"); e("v_mov_b32 v1, 0")
        for i in range(k):
            e(f"v_accvgpr_read_b32 v2, a{SA+i}"); e(f"buffer_store_dword v2, v1, s[88:91], s94 offen offset:{4*i}")
        return
    e("s_waitcnt lgkmcnt(0)"); e(f"s_cmp_lg_u32 s2, {wg}"); e(f"s_cbranch_scc1 {n}_nost")
    e("s_load_dwordx2 s[88:89], s[0:1], 64"); e("s_waitcnt lgkmcnt(0)"); e("s_mov_b32 s90, 256"); e("s_mov_b32 s91, 0x00020000")
    e(f"s_lshl_b32 s94, s{wsg}, 6"); e("v_mov_b32 v1, 0")
    for i in range(k):
        e(f"v_accvgpr_read_b32 v2, a{SA+i}"); e(f"v_accvgpr_read_b32 v3, a{SA}"); e(f"v_sub_u32 v2, v2, v3"); e(f"buffer_store_dword v2, v1, s[88:91], s94 offen offset:{4*i}")
    lab(f"{n}_nost")
def srd(d, lo, nbytes, off=0):
    if off:
        e(f"s_add_u32 s{d}, s{lo}, {off}"); e(f"s_addc_u32 s{d+1}, s{lo+1}, 0")
    else:
        e(f"s_mov_b32 s{d}, s{lo}"); e(f"s_mov_b32 s{d+1}, s{lo+1}")
    e(f"s_mov_b32 s{d+2}, {nbytes}"); e(f"s_mov_b32 s{d+3}, 0x00020000")
def rnd(v, t):
    e(f"v_cvt_pk_bf16_f32 v{t}, v{v}, v{v}"); e(f"v_lshlrev_b32 v{v}, 16, v{t}")
def rnd2(a,b,t):
    e(f"v_cvt_pk_bf16_f32 v{t}, v{a}, v{b}"); e(f"v_lshlrev_b32 v{a}, 16, v{t}"); e(f"v_and_b32 v{b}, 0xffff0000, v{t}")
class LQ:
    def __init__(s): s.n=0; s.done=0
    def issue(s): s.n+=1; return s.n
    def wait(s,i):
        if i>s.done:
            e(f"s_waitcnt lgkmcnt({min(15,s.n-i)})"); s.done=i
class VQ:
    def __init__(s): s.n=0; s.done=0
    def issue(s): s.n+=1; return s.n
    def wait(s,i):
        if i>s.done:
            e(f"s_waitcnt vmcnt({min(63,s.n-i)})"); s.done=i

PD=10; TOUCH=int(os.environ.get('TOUCH','0')); ROT=int(os.environ.get('ROT','1')); HCK=int(os.environ.get('HCK','2'))
SB=20480; N1=4; AS=528; XB=N1*SB; GB=32768; AB=81920; AST=18432; W2S=AB+3*AST
STB=XB+144*AS
ST_SUM=STB+640; ST_SUMH=STB+1920; ST_CS=STB+2176; NON=ST_CS+1280; K1LDS=NON+16
SC=' sc1'
DQ=5; DG=7; DA=10; DH=14; RQ=15; RG=19; RH=22; WC=27; JK=28; RA=248
PUT=31; W2P=34; HST=35; AQ=39; AK=40; AR=41; OA=42; K2D=47; CO=48; CW=49; C1=50; PL=51
HL=52; HS=53; HD=54; HN=58; WA=62; WR=67; WD=68; WST=29; K2R=30
def k12():
    AC=88; HC=92; SQ=112; AF=164; HF=124; NRG=16
    L.append(".p2align 8"); lab("k1_kernel")
    e("s_cmp_ge_u32 s2, 256"); e("s_cbranch_scc1 k1_end")
    e("s_load_dwordx4 s[4:7], s[0:1], 0"); e("s_load_dwordx4 s[84:87], s[0:1], 32"); e("s_load_dwordx2 s[12:13], s[0:1], 72")
    e("s_load_dwordx2 s[8:9], s[0:1], 16"); e("s_load_dwordx4 s[88:91], s[0:1], 48")
    e("s_memrealtime s[96:97]")
    stamp()
    e("s_lshr_b32 s14, s2, 4"); e("s_and_b32 s15, s2, 15")
    e("v_and_b32 v1, 15, v0"); e("v_bfe_u32 v2, v0, 4, 2"); e("v_lshrrev_b32 v3, 6, v0"); e("v_and_b32 v4, 63, v0")
    e("s_nop 1"); e("v_readfirstlane_b32 s16, v3")
    e("v_and_b32 v70, 1, v3"); e("v_lshl_add_u32 v70, v70, 2, v2"); e("v_lshrrev_b32 v71, 1, v1"); e("v_xor_b32 v71, v71, v70"); e("v_and_b32 v72, 1, v1"); e("v_lshl_add_u32 v71, v71, 1, v72")
    e("v_cmp_gt_u32 vcc, 5, v71"); e("v_mov_b32 v72, 2480"); e("v_mov_b32 v73, 1280"); e("s_nop 0"); e("v_cndmask_b32 v72, v72, v73, vcc")
    e("v_cmp_gt_u32 vcc, 10, v71"); e("v_mov_b32 v73, -160"); e("s_nop 1"); e("v_cndmask_b32 v72, v73, v72, vcc")
    e("v_cmp_ne_u32 s[44:45], 15, v71")
    e("v_lshl_add_u32 v72, v71, 4, v72"); e("s_mul_i32 s17, s15, 80"); e("v_add_u32 v72, s17, v72")
    e("v_lshl_add_u32 v73, v3, 3, v2"); e("v_mul_u32_u24 v73, 3840, v73"); e(f"v_add_u32 v{DQ}, v72, v73"); e(f"v_add_u32 v{DQ+1}, {15360-1024}, v{DQ}")
    e("v_and_b32 v70, 1, v3"); e("v_mul_u32_u24 v70, 192, v70"); e("v_add_u32 v70, v70, v4"); e("s_mul_i32 s17, s15, 192")
    for j in range(3):
        e(f"v_add_u32 v71, {64*j}, v70"); e("v_mul_u32_u24 v72, 0x5556, v71"); e("v_lshrrev_b32 v72, 18, v72"); e("v_mul_u32_u24 v73, 12, v72"); e("v_sub_u32 v73, v71, v73")
        e("v_bfe_u32 v74, v72, 3, 1"); e("v_lshlrev_b32 v74, 1, v74"); e("v_xor_b32 v73, v73, v74")
        e("v_mul_u32_u24 v72, 3072, v72"); e("v_lshl_add_u32 v72, v73, 4, v72"); e(f"v_add_u32 v{DG+j}, s17, v72")
        if j: e(f"v_subrev_u32 v{DG+j}, {1024*j}, v{DG+j}")
    e("v_lshrrev_b32 v70, 3, v4"); e("v_and_b32 v71, 7, v4"); e("v_xor_b32 v71, v71, v2"); e("v_xor_b32 v72, 4, v71")
    e("s_lshl_b32 s17, s14, 7"); e("v_lshl_add_u32 v73, v3, 5, v70"); e("v_add_u32 v73, s17, v73"); e("v_mul_u32_u24 v73, 1280, v73")
    e(f"v_lshl_add_u32 v{DA}, v71, 4, v73"); e(f"v_lshl_add_u32 v{DA+1}, v72, 4, v73"); e(f"v_add_u32 v{DA+1}, {10240-1024}, v{DA+1}"); e(f"v_add_u32 v{DA+2}, {20480-2048}, v{DA}"); e(f"v_add_u32 v{DA+3}, {20480-2048}, v{DA+1}")
    e("v_and_b32 v74, 1, v3"); e("v_lshl_add_u32 v73, v74, 3, v70"); e("s_sub_u32 s17, s17, 16"); e("v_add_u32 v73, s17, v73")
    e("v_mul_i32_i24 v73, 1280, v73"); e("v_lshlrev_b32 v74, 2, v74"); e("v_xor_b32 v74, v74, v71"); e(f"v_lshl_add_u32 v{DH}, v74, 4, v73")
    e("s_and_b32 s17, s16, 1"); e("s_cmp_eq_u32 s17, 0"); e("s_cselect_b32 s46, 0xffffff00, -1"); e("s_mov_b32 s47, -1")
    e("s_lshl_b32 s51, s16, 11")
    e("s_mul_i32 s52, s16, 3072"); e(f"s_add_u32 s52, s52, {GB}")
    e("s_lshl_b32 s53, s16, 12"); e(f"s_add_u32 s53, s53, {AB}")
    e("s_lshl_b32 s50, s17, 10"); e(f"s_add_u32 s50, s50, {AB+16384}")
    if TOUCH:
        e("s_add_u32 s17, s14, 4"); e("s_lshl_b32 s17, s17, 5"); e("v_lshrrev_b32 v70, 1, v4"); e("v_add_u32 v70, s17, v70"); e("v_and_b32 v71, 1, v4")
        e("v_mul_u32_u24 v75, 3072, v70"); e("v_mul_u32_u24 v72, 188, v71"); e("v_add_u32 v75, v75, v72"); e("s_mul_i32 s17, s15, 192"); e("v_add_u32 v75, s17, v75")
        e("v_mul_u32_u24 v76, 3840, v70"); e("v_mul_u32_u24 v72, 76, v71"); e("v_add_u32 v76, v76, v72"); e("s_min_u32 s18, s16, 2"); e("s_mul_i32 s18, s18, 1280"); e("s_mul_i32 s17, s15, 80"); e("s_add_u32 s17, s17, s18"); e("v_add_u32 v76, s17, v76")
        e("v_and_b32 v70, 31, v4"); e("v_lshl_add_u32 v70, v3, 5, v70"); e("s_lshl_b32 s17, s14, 7"); e("v_add_u32 v70, s17, v70"); e("v_mul_u32_u24 v77, 1280, v70"); e("v_lshrrev_b32 v70, 5, v4"); e("v_lshl_add_u32 v77, v70, 7, v77")
    e("s_waitcnt lgkmcnt(0)")
    srd(20,4,2048*1280); srd(24,6,640*3840)
    e("s_cmp_lt_u32 s16, 2"); e("s_cselect_b32 s28, s84, s86"); e("s_cselect_b32 s29, s85, s87"); e(f"s_mov_b32 s30, {640*3072}"); e("s_mov_b32 s31, 0x00020000")
    vq=VQ(); gl={}; ga={}
    if EXP&32:
        e("s_mul_i32 s17, s15, 409600"); e(f"s_add_u32 s17, s17, {16<<20}"); e("s_add_u32 s24, s12, s17"); e("s_addc_u32 s25, s13, 0"); e("s_mov_b32 s26, 409600")
        e("s_mov_b32 s28, s24"); e("s_mov_b32 s29, s25"); e("s_mov_b32 s30, 409600")
        e(f"v_lshlrev_b32 v70, 4, v4"); e(f"v_lshl_add_u32 v{DQ}, v3, 11, v70"); e(f"v_mov_b32 v{DQ+1}, v{DQ}")
        e(f"v_mul_u32_u24 v71, 3072, v3"); e(f"v_add_u32 v71, 8192, v71"); e(f"v_add_u32 v{DG}, v71, v70"); e(f"v_mov_b32 v{DG+1}, v{DG}"); e(f"v_mov_b32 v{DG+2}, v{DG}")
    if ROT:
        if ROT>=2: e("s_lshr_b32 s11, s15, 3"); e("s_mul_i32 s11, s11, 5"); e("s_add_u32 s11, s11, s14")
        else: e("s_mov_b32 s11, s14")
        for _ in range(2): e("s_sub_u32 s10, s11, 10"); e("s_cmp_lt_u32 s11, 10"); e("s_cselect_b32 s11, s11, s10")
        e("s_lshl_b32 s10, s11, 1"); e("s_lshl_b32 s11, s11, 7")
    else: e("s_mov_b32 s10, 0"); e("s_mov_b32 s11, 0")
    cur={}
    def setm(sb,imm):
        if cur.get('m0')!=(sb,imm): e(f"s_add_u32 m0, s{sb}, {imm}"); cur['m0']=(sb,imm); return True
    def sets(r,imm):
        if cur.get(r)!=imm: e(f"s_mov_b32 s{r}, {imm}"); cur[r]=imm; return True
    def G(s):
        sl=s%N1
        def dq():
            setm(51,sl*8192); e("s_mov_b64 exec, s[44:45]")
            for j in range(2): e(f"buffer_load_dwordx4 v{DQ+j}, s[24:27], s48 offen offset:{1024*j} lds"); gl[s]=vq.issue()
            e("s_mov_b64 exec, -1")
        def dg(j):
            a=setm(52,sl*12288)
            if j==0:
                e(f"s_mul_i32 s49, s10, {20480 if EXP&32 else 98304}"); e(f"s_mul_i32 s48, s10, {20480 if EXP&32 else 122880}"); e("s_add_u32 s10, s10, 1"); e("s_cmp_eq_u32 s10, 20"); e("s_cselect_b32 s10, 0, s10")
            elif a: e("s_nop 0")
            e(f"buffer_load_dwordx4 v{DG+j}, s[28:31], s49 offen offset:{1024*j} lds"); gl[s]=vq.issue()
        return [lambda j=j:dg(j) for j in range(3)]+[dq]
    def GA(kk):
        sl=kk%3
        def da(j):
            a=setm(53,sl*AST)
            if j==0:
                e("s_mov_b32 s72, s11"); e("s_add_u32 s11, s11, 128"); e("s_cmp_eq_u32 s11, 1280"); e("s_cselect_b32 s11, 0, s11")
            elif a: e("s_nop 0")
            e(f"buffer_load_dwordx4 v{DA+j}, s[20:23], s72 offen offset:{1024*j} lds"); ga[kk]=vq.issue()
        def dh():
            setm(50,sl*AST); e("s_mov_b64 exec, s[46:47]")
            e(f"buffer_load_dwordx4 v{DH}, s[20:23], s72 offen lds"); ga[kk]=vq.issue(); e("s_mov_b64 exec, -1")
        return [lambda j=j:da(j) for j in range(4)]+[dh]
    PRO=int(os.environ.get('PRO','1'))
    if PRO:
        for f in GA(0)+G(0)+G(1): f()
    else:
        for s in range(N1-1):
            for f in GA(s): f()
            for f in G(s): f()
    if TOUCH:
        e(f"buffer_load_dword v{JK}, v75, s[28:31], 0 offen"); vq.issue(); e(f"buffer_load_dword v{JK}, v76, s[24:27], 0 offen"); vq.issue()
        for j in range(4): e(f"buffer_load_dword v{JK}, v77, s[20:23], 0 offen offset:{256*(j+1)}"); vq.issue()
    srd(64,12,16384,WS_CNT)
    e("s_or_b32 s96, s96, 1")
    e("s_cmp_eq_u32 s2, 255"); e("s_cselect_b32 s98, 1, 0")
    e("s_cselect_b32 s92, -1, 1"); e("s_cselect_b32 s93, -1, 0"); e("s_cselect_b32 s94, 1024, 0"); e("s_cselect_b32 s95, 2048, 0")
    for i in range(4): e(f"v_mov_b32 v{HN+i}, 0")
    e("s_lshl_b32 s17, s2, 4"); e("s_add_u32 s17, s17, 8192"); e("s_mul_i32 s18, s16, 3072")
    e("v_lshlrev_b32 v70, 4, v4"); e("v_add_u32 v71, s18, v70"); e("v_mov_b32 v72, s17"); e("s_cmp_eq_u32 s2, 255"); e("s_cselect_b64 vcc, -1, 0"); e("s_nop 1")
    e("v_cndmask_b32 v73, v72, v71, vcc")
    e("s_mov_b64 exec, s[92:93]")
    for so in ("0","s94","s95"): e(f"buffer_store_dwordx4 v[{HN}:{HN+3}], v73, s[64:67], {so} offen sc1"); vq.issue()
    e("s_mov_b64 exec, -1")
    e("v_lshl_add_u32 v71, v3, 10, v70"); e("v_add_u32 v71, 8192, v71"); e("v_add_u32 v73, 4096, v72"); e(f"v_cndmask_b32 v{HL}, v73, v71, vcc")
    e("v_add_u32 v71, 4096, v71"); e(f"v_cndmask_b32 v{HS}, v72, v71, vcc")
    e("v_and_b32 v70, 31, v0"); e("v_lshrrev_b32 v71, 5, v0")
    e("v_and_b32 v72, 3, v70"); e("v_bfe_u32 v73, v70, 3, 1"); e("v_lshl_add_u32 v72, v73, 2, v72"); e("v_xor_b32 v72, 7, v72")
    e("v_lshlrev_b32 v73, 8, v70"); e("v_lshl_add_u32 v73, v72, 5, v73"); e("v_lshl_add_u32 v73, v71, 13, v73"); e("v_add_u32 v73, 16, v73")
    e("v_subrev_u32 v70, 128, v0"); e("v_lshrrev_b32 v71, 3, v70"); e("v_and_b32 v70, 7, v70"); e(f"v_mul_u32_u24 v71, {AST}, v71"); e("v_lshl_add_u32 v71, v70, 4, v71"); e(f"v_add_u32 v71, {AB+16384}, v71")
    e("v_cmp_gt_u32 vcc, 128, v0"); e("s_nop 1"); e("v_cndmask_b32 v73, v71, v73, vcc")
    for i in range(4): e(f"v_mov_b32 v{74+i}, 0x3f803f80")
    e("v_cmp_gt_u32 vcc, 152, v0"); e("s_nop 1"); e("s_mov_b64 exec, vcc"); e("ds_write_b128 v73, v[74:77]"); e("s_mov_b64 exec, -1")
    e("s_cmp_lg_u32 s16, 0"); e("s_cbranch_scc1 k1_nn"); e(f"v_mov_b32 v70, {NON}"); e("v_mov_b32 v71, s96"); e("ds_write_b32 v70, v71"); lab("k1_nn")
    e("v_and_b32 v78, 1, v3"); e("v_lshrrev_b32 v79, 1, v3")
    e("v_lshrrev_b32 v70, 2, v1"); e("v_lshl_add_u32 v71, v2, 3, v70")
    e("v_and_b32 v72, 1, v2"); e("v_lshl_add_u32 v73, v72, 2, v70")
    e("v_and_b32 v74, 3, v1"); e("v_lshlrev_b32 v74, 3, v74"); e("v_lshl_add_u32 v75, v71, 8, v74")
    for t in range(4): e(f"v_lshl_add_u32 v76, v79, 2, {t}"); e("v_xor_b32 v76, v76, v73"); e(f"v_lshl_add_u32 v{RQ+t}, v76, 5, v75")
    for j in range(2):
        e(f"v_lshl_add_u32 v76, v3, 1, {j}"); e("v_xor_b32 v76, v76, v73"); e(f"v_lshl_add_u32 v{RH+j}, v76, 5, v75")
    e("v_mul_u32_u24 v75, 192, v71"); e("v_add_u32 v75, v75, v74"); e(f"v_add_u32 v75, {GB}, v75")
    e("v_mul_u32_u24 v77, 6144, v79")
    for j in range(3):
        e("v_mul_u32_u24 v76, 3, v79"); e(f"v_add_u32 v76, {j}, v76"); e("v_xor_b32 v76, v76, v72"); e(f"v_lshl_add_u32 v{RG+j}, v76, 5, v75")
        e("v_mul_u32_u24 v76, 3, v78"); e(f"v_add_u32 v76, {j}, v76"); e("v_xor_b32 v76, v76, v72"); e("v_lshl_add_u32 v76, v76, 5, v75"); e(f"v_add_u32 v{RH+2+j}, v76, v77")
    e("v_lshrrev_b32 v70, 1, v1"); e("v_xor_b32 v70, v70, v2"); e("v_lshlrev_b32 v71, 7, v1"); e("v_lshl_add_u32 v71, v70, 4, v71")
    e(f"v_add_u32 v{RA+4}, {AB+16384}, v71"); e(f"v_xor_b32 v{RA+5}, 64, v{RA+4}")
    e("v_lshl_add_u32 v71, v78, 13, v71"); e(f"v_add_u32 v71, {AB}, v71")
    e(f"v_lshl_add_u32 v{RA}, v79, 12, v71"); e(f"v_xor_b32 v{RA+1}, 64, v{RA}"); e(f"v_xor_b32 v{RA+2}, 0x1000, v{RA}"); e(f"v_xor_b32 v{RA+3}, 64, v{RA+2}")
    if PRO==1:
        for f in GA(1)+G(2)+GA(2)+G(3): f()
    srd(36,12,2048*1280,WS_O); srd(40,12,2048*3072,WS_H); srd(68,12,8*68*5120,WS_W2); srd(76,90,2048*1280)
    e("s_and_b32 s80, s2, 7"); e("s_lshl_b32 s80, s80, 2"); e("s_bfe_u32 s81, s2, 0x20003"); e("s_add_u32 s80, s80, s81"); e("s_lshr_b32 s81, s2, 5")
    e("s_mul_i32 s82, s81, 348160")
    e(f"v_lshlrev_b32 v{K2R}, 4, v4"); e(f"v_mul_u32_u24 v{K2D}, 5120, v3"); e(f"v_add_u32 v{K2D}, v{K2D}, v{K2R}"); e(f"v_add_u32 v{K2D}, s82, v{K2D}")
    e("v_lshlrev_b32 v80, 1, v79"); e("v_lshl_add_u32 v80, v78, 2, v80"); e("v_xor_b32 v81, 2, v80")
    for h in range(2):
        e(f"v_lshl_add_u32 v70, v{80+h}, 4, v1"); e("v_add_u32 v70, 16, v70"); e(f"v_mul_u32_u24 v70, {AS}, v70"); e("v_lshl_add_u32 v70, v2, 4, v70"); e("v_lshl_add_u32 v70, v79, 8, v70"); e(f"v_add_u32 v{PUT+h}, {XB}, v70")
    e(f"v_mul_u32_u24 v70, {AS}, v1"); e("v_lshl_add_u32 v70, v2, 4, v70"); e(f"v_add_u32 v70, {XB}, v70"); e(f"v_lshl_add_u32 v{PUT+2}, v3, 7, v70")
    e("s_lshl_b32 s17, s14, 3"); e("s_mul_i32 s17, s17, 49152"); e("s_mul_i32 s18, s15, 3072"); e("s_add_u32 s17, s17, s18")
    e("v_lshrrev_b32 v70, 1, v2"); e("v_lshlrev_b32 v70, 8, v70"); e("v_lshl_add_u32 v70, v1, 4, v70"); e("v_and_b32 v71, 1, v2"); e("v_lshl_add_u32 v70, v71, 3, v70"); e("v_add_u32 v70, s17, v70"); e("v_mul_u32_u24 v71, 1536, v79"); e("v_add_u32 v70, v70, v71")
    for h in range(2):
        e(f"v_mul_u32_u24 v71, 49152, v{80+h}"); e(f"v_add_u32 v{HST+2*h}, v70, v71"); e(f"v_add_u32 v{HST+2*h+1}, 49152, v{HST+2*h}")
    e("s_mov_b32 s54, 0xbfb8aa3b"); e("s_mov_b32 s55, 0xbfb8aa3b"); e("s_mov_b32 s56, 1.0"); e("s_mov_b32 s57, 1.0"); e("s_mov_b32 s58, 0xffff0000")
    e("v_and_b32 v70, 127, v0"); e("v_lshrrev_b32 v71, 7, v0")
    e(f"v_add_u32 v{AQ}, 16, v70"); e(f"v_mul_u32_u24 v{AQ}, {AS}, v{AQ}"); e("v_mul_u32_u24 v72, 80, v71"); e(f"v_add_u32 v{AQ}, v{AQ}, v72"); e(f"v_add_u32 v{AQ}, {XB}, v{AQ}")
    e(f"v_add_u32 v{AK}, {-14*AS}, v{AQ}")
    e("s_lshl_b32 s17, s14, 7"); e(f"v_add_u32 v{AR}, s17, v70")
    e(f"v_lshrrev_b32 v73, 4, v{AR}"); e("v_mul_u32_u24 v73, 20480, v73"); e(f"v_and_b32 v72, 15, v{AR}"); e("v_lshl_add_u32 v73, v72, 4, v73")
    e("v_mul_u32_u24 v72, 20, v71"); e("s_mul_i32 s18, s15, 40"); e("v_add_u32 v72, s18, v72")
    for c in range(5):
        e(f"v_add_u32 v74, {4*c}, v72"); e("v_lshrrev_b32 v70, 5, v74"); e(f"v_lshl_add_u32 v{OA+c}, v70, 10, v73"); e("v_bfe_u32 v70, v74, 3, 2"); e(f"v_lshl_add_u32 v{OA+c}, v70, 8, v{OA+c}"); e("v_bfe_u32 v70, v74, 2, 1"); e(f"v_lshl_add_u32 v{OA+c}, v70, 3, v{OA+c}")
    e("s_lshl_b32 s17, s14, 7"); e(f"v_mov_b32 v{CO}, s17"); e("s_lshr_b32 s17, s80, 1"); e("s_lshl_b32 s17, s17, 7"); e(f"v_mov_b32 v{CW}, s17"); e(f"v_mov_b32 v{C1}, 1")
    e("s_lshl_b32 s17, s81, 7"); e("s_add_u32 s17, s17, 4096"); e(f"v_mov_b32 v{W2P}, s17")
    e("s_lshl_b32 s60, s16, 8"); e("s_add_u32 s60, s60, s2"); e("s_mul_hi_u32 s61, s60, 63161284"); e("s_mul_i32 s62, s61, 68"); e("s_sub_u32 s62, s60, s62")
    e("s_sub_u32 s63, s62, 20"); e("s_cmp_lt_u32 s62, 20")
    e("s_cselect_b32 s32, s8, s88"); e("s_cselect_b32 s33, s9, s89"); e(f"s_mov_b32 s34, {1536*1280}"); e(f"s_cselect_b32 s34, {640*1280}, s34"); e("s_mov_b32 s35, 0x00020000")
    e("s_cselect_b32 s63, s62, s63"); e("s_mul_i32 s83, s63, 40960"); e("s_lshl_b32 s62, s61, 7"); e("s_add_u32 s62, s62, 4096"); e("s_mul_i32 s61, s61, 160"); e("s_add_u32 s83, s83, s61")
    e("s_cmp_lt_u32 s60, 544"); e("s_cselect_b32 s83, s83, 0x7f000000"); e("s_cselect_b32 s62, s62, 0x7f000000"); e(f"v_mov_b32 v{WC}, s62")
    e(f"s_mul_i32 s59, s16, 5120"); e(f"s_add_u32 s59, s59, {W2S}")
    for j in range(5):
        e(f"v_add_u32 v70, {64*j}, v4"); e("v_mul_u32_u24 v71, 0x199a, v70"); e("v_lshrrev_b32 v71, 16, v71"); e("v_mul_u32_u24 v72, 10, v71"); e("v_sub_u32 v72, v70, v72")
        e("v_mul_u32_u24 v71, 1280, v71"); e(f"v_lshl_add_u32 v{WA+j}, v72, 4, v71")
    e("v_lshrrev_b32 v70, 2, v1"); e("v_lshl_add_u32 v70, v2, 3, v70"); e("v_mul_u32_u24 v70, 160, v70"); e("v_and_b32 v71, 3, v1"); e("v_lshl_add_u32 v70, v71, 3, v70"); e(f"v_add_u32 v{WR}, s59, v70")
    e("s_mul_i32 s60, s60, 5120"); e(f"v_add_u32 v{WST}, s60, v{K2R}"); e("s_movk_i32 s99, 4096")
    e("v_readfirstlane_b32 s73, v80"); e("v_readfirstlane_b32 s74, v81")
    stamp()
    q=LQ(); fr={}; hf={}; af={}
    def rd(s,t):
        if EXP&8 and s: fr[(s,t)]=0; return
        sl=s%N1; r=4*((10*s+t)%NRG)
        if t<4: a,o,d=RQ+t,sl*8192,1024
        else:
            f,j=(t-4)//3,(t-4)%3; a,o,d=RG+j,sl*12288+f*6144,768
        e(f"ds_read_b64_tr_b16 a[{r}:{r+1}], v{a} offset:{o}"); q.issue()
        e(f"ds_read_b64_tr_b16 a[{r+2}:{r+3}], v{a} offset:{o+d}"); fr[(s,t)]=q.issue()
    def rdh(s,j):
        if EXP&8 and s: hf[(s,j)]=0; return
        sl=s%N1; r=HF+20*(s%2)+4*j
        o,d=(sl*8192,1024) if j<2 else (sl*12288,768)
        e(f"ds_read_b64_tr_b16 a[{r}:{r+1}], v{RH+j} offset:{o}"); q.issue()
        e(f"ds_read_b64_tr_b16 a[{r+2}:{r+3}], v{RH+j} offset:{o+d}"); hf[(s,j)]=q.issue()
    def rda(s,i):
        if EXP&8 and s: af[(s,i)]=0; return
        r=AF+20*(s%2)+4*i; o=((s//2)%3)*AST
        e(f"ds_read_b128 a[{r}:{r+3}], v{RA+(s&1)+2*(i>>1)} offset:{o+(2048 if i&1 else 0)}"); af[(s,i)]=q.issue()
    side={}; sw={}
    def wl(j):
        setm(59,1024*j); e("s_nop 0"); e(f"buffer_load_dwordx4 v{WA+j}, s[32:35], s83 offen lds"); sw['l']=vq.issue()
    def tr(j):
        vq.wait(sw['l']); e(f"ds_read_b64_tr_b16 v[{WD+4*j}:{WD+1+4*j}], v{WR} offset:{32*j}"); q.issue(); e(f"ds_read_b64_tr_b16 v[{WD+2+4*j}:{WD+3+4*j}], v{WR} offset:{32*j+640}"); sw['r']=q.issue()
    def wst(j):
        q.wait(sw['r'])
        e(f"buffer_store_dwordx4 v[{WD+4*j}:{WD+3+4*j}], v{WST}, s[68:71], 0 offen offset:{1024*j} sc1" if j<4 else f"buffer_store_dwordx4 v[{WD+4*j}:{WD+3+4*j}], v{WST}, s[68:71], s99 offen sc1"); sw['s']=vq.issue()
    def hload():
        e("s_mov_b64 exec, s[92:93]"); e(f"buffer_load_dwordx4 v[{HD}:{HD+3}], v{HL}, s[64:67], 0 offen sc1"); sw['h']=vq.issue(); e("s_mov_b64 exec, -1")
    _hc=[0]
    def hsend():
        e("s_mov_b64 exec, s[92:93]"); e(f"buffer_store_dwordx4 v[{HN}:{HN+3}], v{HS}, s[64:67], 0 offen sc1"); vq.issue(); e("s_mov_b64 exec, -1")
    def hstore():
        vq.wait(sw['h']); n=_hc[0]; _hc[0]+=1
        e("s_cmp_eq_u32 s98, 0"); e(f"s_cbranch_scc1 k1_hs{n}")
        for i in range(4): e(f"v_mov_b32 v{HN+i}, v{HD+i}")
        lab(f"k1_hs{n}")
        hsend()
    def hcheck():
        vq.wait(sw['h'])
        e("s_mov_b32 s61, 0"); e("s_cmp_eq_u32 s98, 0"); e("s_cbranch_scc1 k1_hn")
        lab("k1_hl")
        e(f"buffer_store_dwordx4 v[{HD}:{HD+3}], v{HS}, s[64:67], 0 offen sc1")
        e("v_cmp_ne_u32 vcc, 0xff, v0"); e("s_nop 1"); e("s_mov_b64 s[62:63], vcc"); e(f"v_cmp_eq_u32 vcc, 0, v{HD}"); e("s_nop 1"); e("s_and_b64 vcc, vcc, s[62:63]"); e("s_cbranch_vccz k1_hd")
        e(f"buffer_load_dwordx4 v[{HD}:{HD+3}], v{HL}, s[64:67], 0 offen sc1"); e("s_waitcnt vmcnt(0)")
        e("s_add_u32 s61, s61, 1"); e("s_cmp_lt_u32 s61, 50000"); e("s_cbranch_scc1 k1_hl"); e("s_branch k1_hd")
        lab("k1_hn")
        e(f"v_readfirstlane_b32 s60, v{HD}"); e("s_cmp_eq_u32 s60, s96"); e("s_cbranch_scc1 k1_hd")
        e("s_mov_b64 exec, 1")
        e(f"buffer_store_dwordx4 v[{HN}:{HN+3}], v{HS}, s[64:67], 0 offen sc1"); e(f"buffer_load_dwordx4 v[{HD}:{HD+3}], v{HL}, s[64:67], 0 offen sc1"); e("s_waitcnt vmcnt(0)")
        e("s_mov_b64 exec, -1")
        e("s_add_u32 s61, s61, 1"); e("s_cmp_lt_u32 s61, 50000"); e("s_cbranch_scc1 k1_hn")
        lab("k1_hd")
    def sg():
        vq.wait(sw['s']); hcheck()
        e("s_mov_b64 exec, 1"); e(f"buffer_atomic_add v{C1}, v{WC}, s[64:67], 0 offen"); vq.issue(); e("s_mov_b64 exec, -1")
    def pw(): e(f"buffer_load_dword v{PL}, v{W2P}, s[64:67], 0 offen sc1"); sw['p']=vq.issue()
    side[1]=[lambda j=j:wl(j) for j in range(5)]
    side[6]=[lambda j=j:tr(j) for j in range(5)]; side[7]=[lambda j=j:wst(j) for j in range(5)]; side[14]=[sg]; side[19]=[pw]
    side[2]=[hsend]
    for r in (3,6,9,12): side.setdefault(r,[]).insert(0,hload)
    for r in (5,8,11): side.setdefault(r,[]).append(hstore)
    vq.wait(gl[0]); e("s_waitcnt lgkmcnt(0)"); e("s_barrier")
    e(f"v_mov_b32 v70, {NON}"); e("ds_read_b32 v71, v70")
    for i in range(5): rda(0,i)
    for t in range(PD): rd(0,t)
    for j in range(5): rdh(0,j)
    e(f"s_waitcnt lgkmcnt({min(15,q.n)})"); e("v_readfirstlane_b32 s96, v71")
    e("s_cmp_eq_u32 s98, 0"); e("s_cselect_b32 s17, s96, 0")
    for i in range(4): e(f"v_mov_b32 v{HN+i}, s17")
    hsend()
    HP={3:0,7:1,11:2,15:3,19:4}
    HR={2:0,5:1,8:2,11:3,14:4}; RP={(3*t)//2:t for t in range(10)}; AP={2:0,5:1,8:2,11:3,14:4}
    SP={1:0,5:1,9:4}
    for s in range(20):
        sl=s%N1; ab=AF+20*(s%2)
        if s<19:
            vq.wait(gl[s+1])
            if s%2==1: vq.wait(ga[(s+1)//2])
            e("s_waitcnt lgkmcnt(0)"); q.done=q.n
            if not EXP&16: e("s_barrier")
        if s==0: stamp()
        g=G(s+N1) if s+N1<20 else []
        if EXP&1: g=[]; gl[s+N1]=0
        if s%2==1 and (s-1)//2+3<10:
            if EXP&2: ga[(s-1)//2+3]=0
            else: g=g+GA((s-1)//2+3)
        for t2 in range(20):
            t=t2>>1
            if s<19 and t2 in RP: rd(s+1,RP[t2])
            if t2 in HR and s<19: rdh(s+1,HR[t2])
            if s<19 and t2 in AP: rda(s+1,AP[t2])
            if t2==0: q.wait(af[(s,4)])
            q.wait(fr[(s,t)])
            r=4*((10*s+t)%NRG)
            for i in range(2*(t2&1),2*(t2&1)+2):
                a=AC+16*t+4*i
                if EXP&4 and s: continue
                e(f"v_mfma_f32_16x16x32_bf16 v[{a}:{a+3}], a[{r}:{r+3}], a[{ab+4*i}:{ab+4*i+3}], "+(f"v[{a}:{a+3}]" if s else "0"))
            if t2 in HP:
                j=HP[t2]; q.wait(hf[(s,j)]); a=HC+4*j
                e(f"v_mfma_f32_16x16x32_bf16 a[{a}:{a+3}], a[{HF+20*(s%2)+4*j}:{HF+20*(s%2)+4*j+3}], a[{ab+16}:{ab+19}], "+(f"a[{a}:{a+3}]" if s else "0"))
            if t2 in SP:
                i=SP[t2]; a=SQ+4*min(i,2)
                e(f"v_mfma_f32_16x16x32_bf16 a[{a}:{a+3}], a[{ab+4*i}:{ab+4*i+3}], a[{ab+4*i}:{ab+4*i+3}], "+(f"a[{a}:{a+3}]" if s else "0"))
            if (t2%2==1 or len(g)>10-t2//2) and g: g.pop(0)()
            if t2%2==0 and side.get(s): side[s].pop(0)()
        assert not g and not side.get(s)
    e("s_nop 15"); stamp()
    e("s_lshl_b32 s17, s73, 6"); e(f"s_add_u32 s17, s17, {STB+64}"); e("v_lshlrev_b32 v7, 2, v1"); e("v_add_u32 v5, s17, v7")
    e("s_lshl_b32 s17, s74, 6"); e(f"s_add_u32 s17, s17, {STB+64}"); e("v_add_u32 v6, s17, v7")
    e(f"v_add_u32 v7, {STB}, v7"); e("v_lshl_add_u32 v8, v3, 6, v7")
    e("v_lshlrev_b32 v13, 4, v2"); e(f"v_add_u32 v13, {ST_CS}, v13"); e("v_lshl_add_u32 v9, v3, 7, v13"); e("v_mul_u32_u24 v10, 192, v3"); e("v_add_u32 v10, v10, v13"); e("v_add_u32 v10, 512, v10")
    e("v_lshrrev_b32 v14, 1, v3"); e("v_lshl_add_u32 v11, v14, 8, v13"); e("v_mul_u32_u24 v12, 192, v14"); e("v_add_u32 v12, v12, v13"); e("v_add_u32 v12, 512, v12")
    e("v_mul_u32_u24 v14, 640, v14"); e("v_add_u32 v15, v14, v5"); e("v_add_u32 v16, v14, v6")
    for r in range(4):
        e(f"s_mov_b32 exec_lo, {0x00100001<<r}"); e(f"s_mov_b32 exec_hi, {0x10000100<<r}")
        e(f"ds_write_b32 v5, a{SQ+r}"); e(f"ds_write_b32 v5, a{SQ+4+r} offset:64"); e(f"ds_write_b32 v7, a{SQ+8+r}")
    e("s_mov_b32 exec_lo, 0"); e("s_mov_b32 exec_hi, 0xffff")
    for i in range(4): e(f"ds_write_b32 v{15+(i>>1)}, v{AC+48+4*i} offset:{ST_SUM-STB+64*(i&1)}")
    e(f"ds_write_b32 v8, a{HC+4} offset:{ST_SUMH-STB}")
    e("s_mov_b32 exec_lo, 0x00010001"); e("s_mov_b32 exec_hi, 0x00010001")
    for j in range(5): e(f"ds_write_b128 v{9 if j<2 else 10}, a[{HC+4*j}:{HC+4*j+3}] offset:{64*(j if j<2 else j-2)}")
    e("s_mov_b64 exec, -1")
    vq.wait(sw['p'])
    if os.environ.get('ST2'): stamp()
    e(f"v_readfirstlane_b32 s60, v{PL}"); e("s_cmp_ge_u32 s60, 68"); e("s_cbranch_scc1 k1_w_d"); e("s_mov_b32 s61, 0")
    lab("k1_w_s")
    e(f"buffer_load_dword v{PL}, v{W2P}, s[64:67], 0 offen sc1"); e("s_waitcnt vmcnt(0)"); e(f"v_readfirstlane_b32 s60, v{PL}")
    e("s_add_u32 s61, s61, 1"); e("s_cmp_ge_u32 s60, 68"); e("s_cbranch_scc1 k1_w_d"); e("s_cmp_lt_u32 s61, 50000"); e("s_cbranch_scc1 k1_w_s")
    lab("k1_w_d")
    e("s_waitcnt lgkmcnt(0)"); e("s_barrier")
    if os.environ.get('ST2'): stamp()
    VB2=WST; b2={}; a2={}
    ROT2=int(os.environ.get('ROT2','0'))
    e("s_mul_i32 s10, s81, 3"); e("s_lshr_b32 s10, s10, 1"); e("s_mul_i32 s11, s81, 5"); e("s_lshr_b32 s11, s11, 3")
    def rot2(d,u,mul,add):
        n,r,i=(12,10,u) if u<12 else (5,11,u-12)
        e(f"s_add_u32 s{d}, s{r}, {i}"); e(f"s_sub_u32 s3, s{d}, {n}"); e(f"s_cmp_lt_u32 s{d}, {n}"); e(f"s_cselect_b32 s{d}, s{d}, s3"); e(f"s_mul_i32 s{d}, s{d}, {mul}")
        if add: e(f"s_add_u32 s{d}, s{d}, {add}")
    e(f"v_add_u32 v{VB2}, 4096, v{K2D}")
    def B2(u):
        kb=20+4*u if u<12 else 4*(u-12); base=20*(u if u<12 else u-12)
        def ld(t):
            if t==0:
                if ROT2: rot2(48,u,20480,(kb-4*(u if u<12 else u-12))*5120)
                else: e(f"s_mov_b32 s48, {kb*5120}")
            e(f"buffer_load_dwordx4 a[{base+4*t}:{base+4*t+3}], v{K2D if t<4 else VB2}, s[68:71], s48 offen offset:{1024*(t&3)}"); b2[u]=vq.issue()
        return [lambda t=t:ld(t) for t in range(5)]
    VAH=6; VAO=10; VO=14; PW=15; PR=18; AR0=168; ACH=88; ACO=100
    ASL=[168,184,200,216,232,56,72]
    def A2(u,bias=None):
        def al(j):
            if j==0:
                o=4096*(u if u<12 else u-12)
                if ROT2:
                    rot2(49,u,4096,0)
                    if bias is not None: e(f"s_or_b32 s49, s{bias}, s49")
                else: e(f"s_mov_b32 s49, {o}" if bias is None else f"s_or_b32 s49, s{bias}, {o}")
            a=ASL[u%7]+4*j
            e(f"buffer_load_dwordx4 v[{a}:{a+3}], v{(VAH if u<12 else VAO)+j}, s[{40 if u<12 else 36}:{43 if u<12 else 39}], s49 offen"); a2[u]=vq.issue()
        return [lambda j=j:al(j) for j in range(4)]
    NM=18; RI=24
    for i in range(4): e(f"ds_read_b32 v{NM+i}, v{5+(i>>1)} offset:{ST_SUM-STB+640+64*(i&1)}")
    e(f"ds_read_b32 v{NM+4}, v7 offset:{ST_SUMH-STB+192}")
    for i in range(4): e(f"ds_read_b32 v{RI+i}, v{5+(i>>1)} offset:{64*(i&1)}")
    e(f"ds_read_b32 v{RI+4}, v7")
    CSR=52
    q=LQ(); cs={}
    for _ in range(10): q.issue()
    ORD=[4,7,5,8,6,9,0,1,2,3]
    def rcs(n):
        t=ORD[n]; r=CSR+4*(n%4)
        if t<4: e(f"ds_read_b128 v[{r}:{r+3}], v11 offset:{64*t}")
        else: e(f"ds_read_b128 v[{r}:{r+3}], v12 offset:{64*((t-4)%3)+384*((t-4)//3)}")
        cs[t]=q.issue()
    for j in range(2): e(f"ds_read_b128 v[{84-4*j}:{87-4*j}], v9 offset:{64*j}"); cs[('h',j)]=q.issue()
    for n in range(3): rcs(n)
    for u in range(2):
        for f in B2(u): f()
    q.wait(10)
    for i in range(5):
        m,v=NM+i,RI+i
        e(f"v_mul_f32 v{m}, 0x3acccccd, v{m}"); e(f"v_mul_f32 v{v}, 0x3acccccd, v{v}")
        e(f"v_fma_f32 v{v}, -v{m}, v{m}, v{v}"); e(f"v_max_f32 v{v}, 0, v{v}"); rnd(m,14); rnd(v,14)
        e(f"v_add_f32 v{v}, 0x3727c5ac, v{v}"); rnd(v,14); e(f"v_sqrt_f32 v{v}, v{v}"); e("s_nop 0"); rnd(v,14); e(f"v_rcp_f32 v{v}, v{v}"); e(f"v_sub_f32 v{m}, 0, v{m}")
    e("s_nop 0")
    def norm(a,c,i):
        p=i&~1; sl="op_sel:[0,0,0] op_sel_hi:[1,0,1]" if i%2==0 else "op_sel:[0,1,0] op_sel_hi:[1,1,1]"
        s2="op_sel:[0,0] op_sel_hi:[1,0]" if i%2==0 else "op_sel:[0,1] op_sel_hi:[1,1]"
        for k in (0,2): e(f"v_pk_fma_f32 v[{a+k}:{a+k+1}], v[{c+k}:{c+k+1}], v[{NM+p}:{NM+1+p}], v[{a+k}:{a+k+1}] {sl}")
        for k in (0,2): e(f"v_pk_mul_f32 v[{a+k}:{a+k+1}], v[{a+k}:{a+k+1}], v[{RI+p}:{RI+1+p}] {s2}")
    def put(a, addr, off):
        rnd2(a,a+1,13); rnd2(a+2,a+3,17)
        e(f"ds_write_b128 v{addr}, v[{a}:{a+3}] offset:{off}"); q.issue()
    for j in range(2):
        for k in range(4): e(f"v_accvgpr_read_b32 v{76+k}, a{HC+4*j+k}")
        q.wait(cs[('h',j)]); norm(76,84-4*j,4); put(76,PUT+2,64*j)
    BOL=int(os.environ.get('BOL','0')); LB=5
    e("s_mul_i32 s51, s16, 20480")
    def BD(i):
        def ld(t):
            e(f"s_add_u32 m0, s51, {i*5120+(4096 if t==4 else 0)}"); e(f"s_mov_b32 s48, {i*20480}")
            e(f"buffer_load_dwordx4 v{K2D if t<4 else VB2}, s[68:71], s48 offen offset:{1024*(t&3)} lds"); b2['d']=vq.issue()
        return [lambda t=t:ld(t) for t in range(5)]
    SPR['q']=[f for u in range(2,12) for f in B2(u)]+([f for i in range(4) for f in BD(i)] if BOL else []); SPR['per']=int(os.environ.get('PER','11' if BOL else '14')); SPR['on']=True
    def signal(off):
        e("s_mov_b64 exec, 1"); e(f"buffer_atomic_add v{C1}, v{CO}, s[64:67], 0 offen offset:{off}"); vq.issue(); e("s_mov_b64 exec, -1")
    def poll(off):
        e(f"buffer_load_dword v{PL}, v{CW}, s[64:67], 0 offen offset:{off} sc1"); return vq.issue()
    def spin(off,nm):
        e("s_mov_b32 s61, 0")
        lab(f"{nm}_s")
        e(f"buffer_load_dword v{PL}, v{CW}, s[64:67], 0 offen offset:{off} sc1"); e("s_waitcnt vmcnt(0)"); e(f"v_readfirstlane_b32 s60, v{PL}")
        e("s_add_u32 s61, s61, 1"); e("s_cmp_ge_u32 s60, 64"); e(f"s_cbranch_scc1 {nm}_e"); e("s_cmp_lt_u32 s61, 50000"); e(f"s_cbranch_scc1 {nm}_s")
        lab(f"{nm}_e")
    hn=0
    for n in range(10):
        t=ORD[n]
        q.wait(cs[t])
        for i in range(4): norm(AC+16*t+4*i,CSR+4*(n%4),i)
        if n+3<10: rcs(n+3)
        if t<4:
            for i in range(4): put(AC+16*t+4*i,PUT+(i>>1),16*AS*(i&1)+64*t)
        if t>=7:
            j=t-7
            for i in range(4):
                Gt=AC+16*(4+j)+4*i; U=AC+16*(7+j)+4*i; T=68+8*(hn%2); hn+=1
                for k,R in enumerate((Gt,Gt+2,U,U+2)): e(f"v_cvt_pk_bf16_f32 v{T+k}, v{R}, v{R+1}")
                for k,R in enumerate((Gt,Gt+2,U,U+2)): e(f"v_lshlrev_b32 v{R}, 16, v{T+k}"); e(f"v_and_b32 v{R+1}, s58, v{T+k}")
                for k in (0,2): e(f"v_pk_mul_f32 v[{T+k}:{T+k+1}], v[{Gt+k}:{Gt+k+1}], s[54:55]")
                for k in range(4): e(f"v_exp_f32 v{T+k}, v{T+k}")
                for k in (0,2): e(f"v_pk_add_f32 v[{T+k}:{T+k+1}], v[{T+k}:{T+k+1}], s[56:57]")
                for k in range(4): e(f"v_rcp_f32 v{T+k}, v{T+k}")
                for k in (0,2): e(f"v_pk_mul_f32 v[{Gt+k}:{Gt+k+1}], v[{Gt+k}:{Gt+k+1}], v[{T+k}:{T+k+1}]")
                for k in (0,2): e(f"v_cvt_pk_bf16_f32 v{T+4+k}, v{Gt+k}, v{Gt+k+1}")
                for k in (0,2): e(f"v_lshlrev_b32 v{Gt+k}, 16, v{T+4+k}"); e(f"v_and_b32 v{Gt+k+1}, s58, v{T+4+k}")
                for k in (0,2): e(f"v_pk_mul_f32 v[{Gt+k}:{Gt+k+1}], v[{Gt+k}:{Gt+k+1}], v[{U+k}:{U+k+1}]")
                e(f"v_cvt_pk_bf16_f32 v{T+6}, v{Gt}, v{Gt+1}"); e(f"v_cvt_pk_bf16_f32 v{T+7}, v{Gt+2}, v{Gt+3}")
                e(f"buffer_store_dwordx2 v[{T+6}:{T+7}], v{HST+i}, s[40:43], 0 offen offset:{512*j}{SC}"); hst=vq.issue()
    stamp()
    e("s_lshl_b32 s17, s80, 2")
    for j in range(4):
        e(f"v_add_u32 v19, {j}, v3"); e("v_and_b32 v19, 3, v19"); e("v_add_u32 v20, s17, v19")
        e("v_lshl_add_u32 v21, v3, 10, v30")
        e(f"v_mul_u32_u24 v{VAH+j}, 49152, v20"); e(f"v_add_u32 v{VAH+j}, v{VAH+j}, v21")
        e(f"v_mul_u32_u24 v{VAO+j}, 20480, v20"); e(f"v_add_u32 v{VAO+j}, v{VAO+j}, v21")
        if j: e(f"v_mul_u32_u24 v19, 15360, v19"); e(f"v_add_u32 v19, {XB+5120*(j-1)}, v19"); e(f"v_add_u32 v{PW+j-1}, v19, v{K2R}")
        else: e(f"v_mul_u32_u24 v19, 15360, v19"); e(f"v_add_u32 v19, {XB}, v19"); e(f"v_add_u32 v{PR}, v19, v{K2R}")
    e(f"v_add_u32 v{LB}, s51, v{K2R}")
    e("s_add_u32 s17, s17, s16")
    e("s_lshl_b32 s17, s17, 4"); e(f"v_add_u32 v{VO}, s17, v1"); e(f"v_mul_u32_u24 v{VO}, 1280, v{VO}"); e(f"v_lshl_add_u32 v{VO}, v2, 3, v{VO}"); e("s_mul_i32 s19, s81, 160"); e(f"v_add_u32 v{VO}, s19, v{VO}")
    vq.wait(hst); signal(0)
    e("s_waitcnt lgkmcnt(0)"); e("s_barrier")
    q=LQ(); kr={}
    QR=52; LG=72; TT=80; OP=72; KB=(88,108,128,148)
    for c in range(5): e(f"ds_read_b128 v[{QR+4*c}:{QR+3+4*c}], v{AQ} offset:{320+16*c}"); q.issue()
    def rk(n):
        w=n%8; o=160 if n>=8 else 0; b=KB[n%4]
        for c in range(5): e(f"ds_read_b128 v[{b+4*c}:{b+3+4*c}], v{AK} offset:{(14-2*w)*AS+o+16*c}"); kr[n]=q.issue()
    for n in range(3): rk(n)
    SIGW=int(os.environ.get('SIGW','5'))
    for w in range(8):
        rk(w+3)
        q.wait(kr[w]); K=KB[w%4]
        e(f"v_pk_mul_f32 v[{TT}:{TT+1}], v[{QR}:{QR+1}], v[{K}:{K+1}]"); e(f"v_pk_mul_f32 v[{TT+2}:{TT+3}], v[{QR+2}:{QR+3}], v[{K+2}:{K+3}]")
        for d in range(4,20,2): e(f"v_pk_fma_f32 v[{TT+(d&2)}:{TT+1+(d&2)}], v[{QR+d}:{QR+1+d}], v[{K+d}:{K+d+1}], v[{TT+(d&2)}:{TT+1+(d&2)}]")
        e(f"v_pk_add_f32 v[{TT}:{TT+1}], v[{TT}:{TT+1}], v[{TT+2}:{TT+3}]"); e(f"v_add_f32 v{LG+w}, v{TT}, v{TT+1}")
        rnd(LG+w,TT); e(f"v_mul_f32 v{LG+w}, 0x3e64f92e, v{LG+w}"); rnd(LG+w,TT)
        e(f"v_cmp_le_u32 vcc, {2*w}, v{AR}"); e(f"v_mov_b32 v{TT+1}, 0xce6e6b28"); e("s_nop 0"); e(f"v_cndmask_b32 v{LG+w}, v{TT+1}, v{LG+w}, vcc")
        if w==SIGW-3:
            SPR['on']=False
            while SPR['q']: SPR['q'].pop(0)()
            ph=poll(0)
        if w==SIGW:
            vq.wait(ph)
            e(f"v_readfirstlane_b32 s60, v{PL}"); e("s_cmp_ge_u32 s60, 64"); e("s_cselect_b32 s75, 0, 0x7f000000")
            SPR['q']=[f for u in range(5) for f in A2(u,75)]; SPR['per']=8; SPR['n']=0; SPR['on']=True
    e(f"v_max3_f32 v{TT}, v{LG}, v{LG+1}, v{LG+2}"); e(f"v_max3_f32 v{TT}, v{TT}, v{LG+3}, v{LG+4}"); e(f"v_max3_f32 v{TT}, v{TT}, v{LG+5}, v{LG+6}"); e(f"v_max_f32 v{TT}, v{TT}, v{LG+7}")
    e(f"v_mov_b32 v{TT+1}, 0")
    for w in range(8): e(f"v_sub_f32 v{LG+w}, v{LG+w}, v{TT}"); e(f"v_mul_f32 v{LG+w}, 0x3fb8aa3b, v{LG+w}")
    for w in range(8): e(f"v_exp_f32 v{LG+w}, v{LG+w}")
    e("s_nop 0")
    for w in range(8): e(f"v_add_f32 v{TT+1}, v{TT+1}, v{LG+w}")
    e(f"v_rcp_f32 v{TT+1}, v{TT+1}"); e("s_nop 0")
    for w in range(8): e(f"v_mul_f32 v{LG+w}, v{LG+w}, v{TT+1}")
    for w in range(0,8,2): rnd2(LG+w,LG+1+w,TT)
    for w in range(8):
        if w+11<16: rk(w+11)
        q.wait(kr[8+w]); V=KB[w%4]; P=LG+(w&~1); osl="op_sel:[0,0,0] op_sel_hi:[0,1,1]" if w%2==0 else "op_sel:[1,0,0] op_sel_hi:[1,1,1]"
        if w==7: e("s_barrier")
        for d in range(0,20,2):
            if w==0: e(f"v_pk_mul_f32 v[{QR+d}:{QR+1+d}], v[{P}:{P+1}], v[{V+d}:{V+d+1}] op_sel:[0,0] op_sel_hi:[0,1]")
            else: e(f"v_pk_fma_f32 v[{QR+d}:{QR+1+d}], v[{P}:{P+1}], v[{V+d}:{V+d+1}], v[{QR+d}:{QR+1+d}] {osl}")
    SPR['on']=False
    while SPR['q']: SPR['q'].pop(0)()
    for d in range(10): e(f"v_cvt_pk_bf16_f32 v{OP+d}, v{QR+2*d}, v{QR+1+2*d}")
    for c in range(5):
        e(f"buffer_store_dwordx2 v[{OP+2*c}:{OP+1+2*c}], v{OA+c}, s[36:39], 0 offen{SC}"); ost=vq.issue()
    stamp()
    e("s_cmp_eq_u32 s75, 0"); e("s_cbranch_scc1 k1_hf")
    sv=(vq.n,vq.done,dict(a2))
    e("s_waitcnt vmcnt(0)"); signal(2048)
    spin(0,"k1_h")
    for u in range(5):
        for f in A2(u): f()
    e("s_waitcnt vmcnt(16)"); e("s_branch k1_hg")
    vq.n,vq.done,a2=sv[0],sv[1],sv[2]
    lab("k1_hf")
    vq.wait(a2[0])
    lab("k1_hg")
    a2[0]=0
    for u in range(1,5): a2[u]=vq.n-16+4*u
    vq.done=vq.n-16; ost=vq.n
    assert max(v for k,v in b2.items())<=vq.done
    stamp()
    XR=20
    q=LQ(); pr={}; bl={}
    R0=108
    def rdp(t,st,sl):
        r=R0+60*st+4*(t*3+sl); e(f"ds_read_b128 v[{r}:{r+3}], v{PR} offset:{5120*sl+1024*t}"); pr[(t,st)]=q.issue()
    for u in range(17):
        g=[]
        if u==4:
            vq.wait(ost); e("s_mov_b64 exec, 1"); e(f"buffer_atomic_add v{C1}, v{CO}, s[64:67], s75 offen offset:2048"); vq.issue(); e("s_mov_b64 exec, -1")
        if u==6: g.append(lambda: b2.__setitem__('po',poll(2048)))
        if u==7+1:
            vq.wait(b2['po']); e(f"v_readfirstlane_b32 s60, v{PL}"); e("s_cmp_ge_u32 s60, 64"); e("s_cselect_b32 s75, 0, 0x7f000000")
        if u==12:
            stamp()
            e("s_cmp_eq_u32 s75, 0"); e("s_cbranch_scc1 k1_of")
            sv=(vq.n,vq.done,dict(a2))
            spin(2048,"k1_o")
            for uu in range(12,16):
                for f in A2(uu): f()
            e("s_waitcnt vmcnt(0)")
            vq.n,vq.done,a2=sv[0],sv[1],sv[2]
            lab("k1_of")
            stamp()
        if u==0: g+=A2(5)+A2(6)
        if 1<=u<=5: g+=A2(u+6)
        if 8<=u<=12: g+=A2(u+4,75 if u<12 else None)
        if BOL:
            if u==5: g+=B2(16)
            if 6<=u<=9:
                i=u-6
                g+=[lambda t=t,i=i: (e(f"ds_read_b128 a[{20*i+4*t}:{20*i+4*t+3}], v{LB} offset:{5120*i+1024*t}"),bl.__setitem__(12+i,q.issue())) for t in range(5)]
        elif 1<=u<=10:
            if u%2==1: bo=B2(12+(u-1)//2)
            g+=bo[:3] if u%2==1 else bo[3:]
        if u==13: g+=[lambda t=t: (e(f"buffer_load_dwordx2 v[{XR+2*t}:{XR+1+2*t}], v{VO}, s[20:23], 0 offen offset:{32*t}"),b2.__setitem__('x',vq.issue())) for t in range(5)]
        if u in (12,13,14):
            k0=(0,5,10)[u-12]
            g+=[lambda k=k: (e(f"ds_write_b128 v{PW+k//5}, v[{ACH+20+4*k}:{ACH+20+4*k+3}] offset:{1024*(k%5)}"),q.issue()) for k in range(k0,k0+5)]
        if u==15:
            e("s_waitcnt lgkmcnt(0)"); q.done=q.n; e("s_barrier")
        if u in (15,16): g+=[lambda k=k: rdp(k//3,0,k%3) for k in (range(8) if u==15 else range(8,15))]
        vq.wait(a2[u])
        if u in bl: q.wait(bl[u])
        else: vq.wait(b2[u])
        bb=20*(u if u<12 else u-12)
        for n in range(20):
            j,t=n//5,n%5
            a=ASL[u%7]+4*j
            if u<12: c=f"v[{ACH+20*j+4*t}:{ACH+20*j+4*t+3}]"
            else: c=f"a[{ACO+20*j+4*t}:{ACO+20*j+4*t+3}]"
            e(f"v_mfma_f32_16x16x32_bf16 {c}, a[{bb+4*t}:{bb+4*t+3}], v[{a}:{a+3}], "+(c if u not in (0,12) else "0"))
            if g and n%2==1: g.pop(0)()
        assert not g
    e("s_waitcnt lgkmcnt(0)"); q.done=q.n; e("s_barrier"); e("s_nop 7")
    for j in (1,2,3):
        for t in range(5): e(f"ds_write_b128 v{PW+j-1}, a[{ACO+20*j+4*t}:{ACO+20*j+4*t+3}] offset:{1024*t}"); q.issue()
    def psum(t,st,D):
        q.wait(pr[(t,st)])
        r=R0+60*st+12*t
        for k in (0,2): e(f"v_pk_add_f32 v[{r+k}:{r+k+1}], v[{r+k}:{r+k+1}], v[{r+4+k}:{r+5+k}]")
        for k in (0,2): e(f"v_pk_add_f32 v[{D+k}:{D+k+1}], v[{D+k}:{D+k+1}], v[{r+8+k}:{r+9+k}]")
        for k in (0,2): e(f"v_pk_add_f32 v[{D+k}:{D+k+1}], v[{D+k}:{D+k+1}], v[{r+k}:{r+k+1}]")
        rnd2(D,D+1,32); rnd2(D+2,D+3,33)
    for t in range(2): psum(t,0,ACH+4*t)
    e("s_waitcnt lgkmcnt(0)"); q.done=q.n; e("s_barrier")
    for t in range(5):
        for sl in range(3): rdp(t,1,sl)
    for t in range(2,5): psum(t,0,ACH+4*t)
    vq.wait(b2['x'])
    for t in range(5):
        for k in range(4): e(f"v_accvgpr_read_b32 v{52+4*t+k}, a{ACO+4*t+k}")
        for r in range(4):
            xr=XR+2*t+(r>>1)
            e(f"v_lshlrev_b32 v{228+4*t+r}, 16, v{xr}" if r%2==0 else f"v_and_b32 v{228+4*t+r}, 0xffff0000, v{xr}")
    for t in range(5):
        A=52+4*t; B=ACH+4*t; X=228+4*t
        psum(t,1,A)
        for r in (0,2): e(f"v_pk_add_f32 v[{A+r}:{A+r+1}], v[{A+r}:{A+r+1}], v[{X+r}:{X+r+1}]")
        rnd2(A,A+1,32); rnd2(A+2,A+3,33)
        for r in (0,2): e(f"v_pk_add_f32 v[{A+r}:{A+r+1}], v[{A+r}:{A+r+1}], v[{B+r}:{B+r+1}]")
        e(f"v_cvt_pk_bf16_f32 v{72+2*t}, v{A}, v{A+1}"); e(f"v_cvt_pk_bf16_f32 v{73+2*t}, v{A+2}, v{A+3}")
        e(f"buffer_store_dwordx2 v[{72+2*t}:{73+2*t}], v{VO}, s[76:79], 0 offen offset:{32*t}")
    stamp()
    stamp_out("k1",16)
    lab("k1_end"); e("s_endpgm")

N="parallel_sum__sliding_local_dilated__glu_gated_swiglu__prompt"
hdr=open(f"cdna_kernels/{N}.s.ref").read().split("; Override")[0]
k12()
out=hdr
out+=f"; @launch kernel=k1_kernel grid=(256,1,1) block=(256,1,1) lds={K1LDS}\n"
out+='.amdgcn_target "amdgcn-amd-amdhsa--gfx950"\n.text\n.globl k1_kernel\n.p2align 8\n'
out+="\n".join(L)+"\n.section .rodata,\"a\"\n"
out+=f""".p2align 6
.amdhsa_kernel k1_kernel
  .amdhsa_next_free_vgpr {256+(256 if STAMP else 240)}
  .amdhsa_next_free_sgpr 102
  .amdhsa_accum_offset 256
  .amdhsa_group_segment_fixed_size 0
  .amdhsa_kernarg_size 80
  .amdhsa_user_sgpr_count 2
  .amdhsa_user_sgpr_kernarg_segment_ptr 1
  .amdhsa_system_sgpr_workgroup_id_x 1
.end_amdhsa_kernel
"""
open(os.environ.get("OUT",f"e1.s"),"w").write(out)
```
